```python
import torch

def _softmax(x, axis=-1):
    return torch.softmax(x, dim=axis)
def _gelu(x):
    return torch.nn.functional.gelu(x, approximate="tanh")
def _silu(x):
    return torch.nn.functional.silu(x)
def _sigmoid(x):
    return torch.sigmoid(x)
def _layernorm(x, axis=-1, eps=1e-5):
    m = x.mean(dim=axis, keepdim=True)
    v = x.var(dim=axis, keepdim=True, unbiased=False)
    return (x - m) / torch.sqrt(v + eps)
def _scatter_add(tgt, idx, src, axis=0):
    return tgt.clone().index_add_(axis, idx, src)
def _segment_sum(src, seg, n):
    out = torch.zeros((n,) + src.shape[1:], dtype=src.dtype)
    return out.index_add_(0, seg, src)
def _pad(x, pw):
    flat = tuple(v for pair in reversed(pw) for v in pair)
    return torch.nn.functional.pad(x, flat)

kernel_name = 'standalone__gqa_block_cached__decode'

def setup_inputs():

    _w = (lambda a: (lambda t: t.to(torch.bfloat16) if t.is_floating_point() else t)(torch.as_tensor(a)))
    B, Sq, D = 8, 1, 448
    Hq, Hkv, Sk, Dh = 16, 8, 4096, 256
    assert Hq % Hkv == 0, (Hq, Hkv)
    return {
        "x": _w((lambda *s: torch.randn(*s, dtype=torch.bfloat16) * 0.8)(B, Sq, D)),
        "k_cache": _w((lambda *s: torch.randn(*s, dtype=torch.bfloat16) * 0.8)(B, Hkv, Sk, Dh)),
        "v_cache": _w((lambda *s: torch.randn(*s, dtype=torch.bfloat16) * 0.05)(B, Hkv, Sk, Dh)),
        "wq": _w((lambda *s: torch.randn(*s, dtype=torch.bfloat16) * 0.8)(D, Hq * Dh) * (D ** -0.5)),
        "wo": _w((lambda *s: torch.randn(*s, dtype=torch.bfloat16) * 0.05)(Hq * Dh, D) * ((Hq * Dh) ** -0.5)),
    }

def reference(x, k_cache, v_cache, wq, wo):
    B, Sq, D = x.shape
    Hq, Dh = 16, 256
    Hkv = k_cache.shape[1]
    rep = Hq // Hkv
    q = (lambda x, *d: x.permute(*d))((x @ wq).reshape(B, Sq, Hq, Dh), 0, 2, 1, 3)
    k = (lambda x, n, axis: torch.repeat_interleave(x, n, dim=axis))(k_cache, rep, axis=1)
    v = (lambda x, n, axis: torch.repeat_interleave(x, n, dim=axis))(v_cache, rep, axis=1)
    scores = torch.einsum("bhqd,bhkd->bhqk", q, k) * (Dh ** -0.5)
    p = _softmax(scores, axis=-1)
    o = torch.einsum("bhqk,bhkd->bhqd", p, v)
    return (lambda x, *d: x.permute(*d))(o, 0, 2, 1, 3).reshape(B, Sq, Hq * Dh) @ wo
```

```python
import sys, math, struct

KNAME = "standalone__gqa_block_cached__decode_kernel"

RING      = 0
WQ_LDS    = 131072
Q_LDS     = WQ_LDS + 14336
PART      = Q_LDS + 1024
ML        = PART + 8192
OBUF      = ML + 64
FLG       = OBUF + 512
XFLG      = OBUF + 768
TAGL      = OBUF + 776
LDS_TOTAL = OBUF + 1024
QBOX  = 0
H1BOX = 0x100000
H1SRC = 1152
H2BOX = 0x220000
EPOCH = 0x320000
K1, K2 = 0x9E3779B9, 0x7F4A7C15
SPIN_MAX = 200000
C_SCALE = math.log2(math.e) / 16.0

WI, WH = 3, 3
UPT, W, NREG = 4, 3, 3
KPOL = VPOL = " sc0 sc1 nt"
WQPOL = " nt"
POLLDELAY, QSTAG, POLLSLEEP = 36, 24, 8
WOPF, WOTHIN = 32, 4
LATEWARM = 112
H1SLOW, H1FAST, H2DELAY = 12, 2, 12
DENORM = False
DIAGCNT = 0
EXPBY = 0
WMID = (0, 0, 0)
STREAM_FIRST = 0
CODEPF = 0
CODEPF_WAVE = 3
SPF = 0
SWARM = 0
PERM = 0

def f2u(x): return struct.unpack("<I", struct.pack("<f", x))[0]

class Asm:
    def __init__(self): self.o = []
    def __call__(self, s, c=None): self.o.append("    " + s + (f"    ; {c}" if c else ""))
    def label(self, s): self.o.append(s + ":")
    def raw(self, s): self.o.append(s)
    def c(self, s):
        for l in s.strip("\n").split("\n"): self.o.append("    ; " + l)
    def nop(self, n):
        while n > 0:
            k = min(n, 16); self(f"s_nop {k-1}"); n -= k
    def text(self): return "\n".join(self.o) + "\n"

def vr(b, n=1): return f"v{b}" if n == 1 else f"v[{b}:{b+n-1}]"

HEADER = """\
"""

def gen():
    a = Asm()
    def poll(name, loads, check, sleep=0):
        a("s_mov_b32 s47, 0")
        a.label(f"L_{name}poll")
        loads()
        a("s_waitcnt vmcnt(0)")
        check()
        a(f"s_cbranch_vccz L_{name}done")
        if sleep: a(f"s_sleep {sleep}")
        a("s_add_u32 s47, s47, 1")
        a(f"s_cmp_le_u32 s47, {SPIN_MAX}")
        a(f"s_cbranch_scc1 L_{name}poll")
        a.label(f"L_{name}done")
        if DIAGCNT: a(f"s_mov_b32 s{ {'q':60,'h1':61,'h2':62}[name] }, s47")

    a.raw(HEADER.rstrip("\n"))
    a.raw(f"; @launch grid=(256,1,1) block=(512,1,1) lds={LDS_TOTAL}")
    a.raw('.amdgcn_target "amdgcn-amd-amdhsa--gfx950"')
    a.raw(".text")
    a.raw(f".globl {KNAME}")
    a.raw(".p2align 8")
    a.raw(f".type {KNAME},@function")
    a.label(KNAME)
    a("s_cmp_ge_u32 s2, 0x100", "extra workgroups leave at once")
    a("s_cbranch_scc1 L_end")
    a("s_load_dwordx16 s[4:19], s[0:1], 0", "x, k, v, wq, wo, out, debug, ws")
    if PERM == 1:
        a("s_lshl_b32 s3, s2, 3"); a("s_lshr_b32 s2, s2, 5"); a("s_or_b32 s2, s2, s3"); a("s_and_b32 s2, s2, 0xff")
    if PERM == 2:
        a("s_xor_b32 s3, s2, 1"); a("s_and_b32 s46, s2, 0xf8"); a("s_cmp_eq_u32 s46, 0x38"); a("s_cselect_b32 s2, s3, s2")
    a("v_lshrrev_b32 v2, 6, v0")
    a("v_and_b32 v1, 63, v0", "lane")
    a("s_and_b32 s20, s2, 7", "hkv")
    a("s_lshr_b32 s21, s2, 3", "r")
    a("v_readfirstlane_b32 s3, v2", "wave")
    a("s_lshr_b32 s22, s21, 2", "batch")
    a("s_and_b32 s23, s21, 3", "split")
    a("v_and_b32 v2, 15, v1", "i / j = lane & 15")
    a("v_lshrrev_b32 v3, 4, v1", "g = lane >> 4")
    if STREAM_FIRST:
        a("s_cmp_lt_u32 s3, 4")
        a("s_cbranch_scc1 L_help")
        a.raw("@@A")
        a.label("L_help")
    else:
        a("s_cmp_ge_u32 s3, 4")
        a("s_cbranch_scc1 L_stream")

    a.c("==================== helpers ====================")
    a("s_lshl_b32 s40, s22, 3"); a("s_add_u32 s40, s40, s20", "pair = b*8 + hkv")
    a("s_lshl_b32 s41, s20, 2"); a("s_add_u32 s41, s41, s23", "rho = hkv*4 + split")
    a("s_cmp_eq_u32 s3, 0")
    a("s_cbranch_scc0 L_not_w0")
    a.c("---- wave 0: partial q = x[8][112 rows of quarter 'split'] @ wq[those rows][64 columns of block b of this hkv]")
    a.c("x fragment offsets: (i&7)*896 + split*224 + g*8 (+ ks*32)")
    a("v_and_b32 v4, 7, v2")
    a("v_mul_u32_u24 v4, 896, v4")
    a("v_lshl_add_u32 v4, v3, 3, v4")
    a("s_mul_i32 s43, s23, 224")
    a("v_add_u32 v4, s43, v4")
    a.c("wq DMA offsets: (L>>3)*8192 + ((L&7) ^ (((L>>4)&3)<<1))*16")
    a("v_lshrrev_b32 v5, 3, v1"); a("v_lshlrev_b32 v5, 13, v5")
    a("v_and_b32 v6, 7, v1"); a("v_lshlrev_b32 v8, 1, v3"); a("v_xor_b32 v6, v6, v8")
    a("v_lshl_add_u32 v5, v6, 4, v5")
    a("s_mul_i32 s42, s23, 112*8192"); a("s_lshl_b32 s43, s20, 10"); a("s_add_u32 s42, s42, s43")
    a("s_lshl_b32 s43, s22, 7"); a("s_add_u32 s42, s42, s43")
    a(f"v_mov_b32 v7, {EPOCH}")
    a.c("publish offset: QBOX + (((hkv*8 + batch)*4 + kq)*128 + b*16 + j)*16, batch = 4*(g&1) + 2*(g>>1) + store")
    a("v_and_b32 v8, 1, v3"); a("v_lshlrev_b32 v8, 2, v8")
    a("v_lshrrev_b32 v9, 1, v3"); a("v_lshl_add_u32 v8, v9, 1, v8")
    a("s_lshl_b32 s48, s20, 3"); a("v_add_u32 v8, s48, v8")
    a("v_lshlrev_b32 v8, 2, v8"); a("v_add_u32 v8, s23, v8"); a("v_lshlrev_b32 v8, 7, v8")
    a("s_lshl_b32 s48, s22, 4"); a("v_add_u32 v8, s48, v8"); a("v_add_u32 v8, v8, v2")
    a("v_lshlrev_b32 v36, 4, v8")
    a("s_waitcnt lgkmcnt(0)")
    a("s_mov_b32 s24, s10"); a("s_mov_b32 s25, s11"); a("s_mov_b32 s26, 3670016"); a("s_mov_b32 s27, 0x20000", "SRD wq")
    for n in range(14):
        a(f"s_mov_b32 m0, {WQ_LDS + n*1024}")
        a(f"s_add_u32 s43, s42, {n*8*8192}")
        a(f"buffer_load_dwordx4 v5, s[24:27], s43 offen{WQPOL} lds")
    for ks in range(7):
        a(f"global_load_dwordx2 {vr(16+ks*2,2)}, v4, s[4:5] offset:{ks*32}")
    a("global_load_dwordx2 v[12:13], v7, s[18:19]", "epoch word (whatever an earlier launch left there)")
    a("s_barrier", "B0: these loads go ahead of the first K requests")
    a.c("transposed reads: WQ_LDS + row*128 + (((2ct + (c4>>1)) ^ (((row>>1)&3)<<1))*16 + (c4&1)*8, row = 4g + (j>>2), c4 = j&3")
    a("v_lshrrev_b32 v6, 2, v2")
    a("v_lshl_add_u32 v6, v3, 2, v6")
    a("v_lshlrev_b32 v8, 7, v6")
    a("v_and_b32 v9, 1, v2"); a("v_lshl_add_u32 v8, v9, 3, v8")
    a(f"v_add_u32 v8, {WQ_LDS}, v8")
    a("v_bfe_u32 v6, v6, 1, 2"); a("v_lshlrev_b32 v6, 1, v6")
    a("v_bfe_u32 v9, v2, 1, 1")
    for ct in range(4):
        a(f"v_add_u32 v10, {2*ct}, v9"); a("v_xor_b32 v10, v10, v6")
        a(f"v_lshl_add_u32 v{32+ct}, v10, 4, v8")
    a("v_cmp_gt_u32 s[50:51], 2, v3", "g < 2")
    a("s_waitcnt vmcnt(8)", "wq block is in LDS")
    for ks in range(7):
        for ct in range(4):
            a(f"ds_read_b64_tr_b16 {vr(72+(ks*4+ct)*2,2)}, v{32+ct} offset:{ks*2048}")
    a("s_waitcnt vmcnt(0)")
    a("v_readfirstlane_b32 s44, v12")
    a("v_readfirstlane_b32 s45, v13")
    a.nop(2)
    a(f"s_add_u32 s44, s44, {K1:#x}", "tag of this launch")
    a(f"s_add_u32 s45, s45, {K2:#x}")
    a("s_getreg_b32 s36, hwreg(HW_REG_XCC_ID, 0, 4)")
    a("s_waitcnt lgkmcnt(0)")
    QD = 128
    for ks in range(7):
        for ct in range(4):
            c = "0" if ks == 0 else vr(QD+4*ct,4)
            a(f"v_mfma_f32_16x16x16_bf16 {vr(QD+4*ct,4)}, {vr(16+ks*2,2)}, {vr(72+(ks*4+ct)*2,2)}, {c}")
    a.c("granule = 4 values (column tiles 0..3 at column j, rounded to 22 bits) with a 10-bit tag piece in the low bits of each word;")
    a.c("the last piece carries the XCD id in its low 4 bits")
    a("s_and_b32 s28, s44, 0x3ff"); a("s_bfe_u32 s29, s44, 0xa000a"); a("s_bfe_u32 s30, s44, 0xa0014")
    a("s_and_b32 s31, s45, 0x3f0")
    a("s_or_b32 s31, s31, s36")
    a("s_mov_b32 s32, 0xfffffc00")
    a.nop(6)
    for st in range(2):
        for ct in range(4):
            a(f"v_cndmask_b32 v{40+4*st+ct}, v{QD+4*ct+st+2}, v{QD+4*ct+st}, s[50:51]")
    for st in range(2):
        for ct in range(4):
            a(f"v_add_u32 v{40+4*st+ct}, 0x200, v{40+4*st+ct}")
    for ct in range(4):
        a(f"v_mov_b32 v{48+ct}, s{28+ct}")
    for st in range(2):
        for ct in range(4):
            a(f"v_and_or_b32 v{40+4*st+ct}, v{40+4*st+ct}, s32, v{48+ct}")
    for st in range(2):
        if st: a("v_add_u32 v36, 8192, v36")
        a(f"global_store_dwordx4 v36, {vr(40+4*st,4)}, s[18:19] sc1")
    G = 64
    a.c("gather the 4 x 128 granules of (hkv, b); load slot k takes quarter k ^ split (the sums pair {0,1} and {2,3}, so all four")
    a.c("splits add the same numbers the same way).  Slot 0 is fetched first: the other splits then find it in L2 (speed only).")
    a("s_lshl_b32 s48, s20, 3"); a("s_add_u32 s48, s48, s22"); a("s_lshl_b32 s48, s48, 13")
    a("v_lshl_add_u32 v12, v1, 4, s48")
    a("s_lshl_b32 s43, s23, 11")
    for k in range(4):
        a(f"s_xor_b32 s46, s43, {k*2048}"); a(f"v_add_u32 v{8+k}, s46, v12")
    a(f"s_sleep {POLLDELAY}", "reading the lines before they are written only slows the writers down")
    for q2 in range(2):
        a(f"global_load_dwordx4 {vr(G+q2*4,4)}, v8, s[18:19] offset:{q2*1024} sc1")
    a("s_waitcnt vmcnt(0)")
    a(f"s_sleep {QSTAG}")
    def q_loads():
        for k in range(4):
            for q2 in range(2):
                a(f"global_load_dwordx4 {vr(G+(k*2+q2)*4,4)}, v{8+k}, s[18:19] offset:{q2*1024} sc1")
    def q_check():
        for gi in range(8):
            b_ = G + 4*gi
            if gi == 0:
                a(f"v_xor_b32 v32, s28, v{b_}"); a(f"v_xor_b32 v33, s29, v{b_+1}"); a(f"v_xor_b32 v34, s30, v{b_+2}")
                a("v_or3_b32 v32, v32, v33, v34"); a(f"v_xor_b32 v35, s31, v{b_+3}")
            else:
                a(f"v_xor_b32 v33, s28, v{b_}"); a(f"v_xor_b32 v34, s29, v{b_+1}"); a("v_or3_b32 v32, v32, v33, v34")
                a(f"v_xor_b32 v33, s30, v{b_+2}"); a(f"v_xor_b32 v34, s31, v{b_+3}")
                a("v_or_b32 v32, v32, v33"); a("v_or_b32 v35, v35, v34")
        a("v_and_b32 v32, 0x3ff, v32"); a("v_and_b32 v35, 0x3ff, v35")
        a("v_and_b32 v33, 0x3f0, v35"); a("v_or_b32 v32, v32, v33")
        a("v_cmp_ne_u32 vcc, 0, v32")
    poll("q", q_loads, q_check, POLLSLEEP)
    a.c("do all 32 producers of this group sit on this XCD?")
    a("v_or_b32 v33, v32, v35")
    a("v_cmp_ne_u32 vcc, 0, v33")
    a("s_cmp_eq_u64 vcc, 0")
    a("s_cselect_b32 s36, 1, 0")
    a(f"v_mov_b32 v33, {XFLG}"); a("v_mov_b32 v36, s36")
    a("ds_write_b32 v33, v36")
    a(f"v_mov_b32 v33, {TAGL}"); a("v_mov_b32 v36, s44"); a("v_mov_b32 v37, s45")
    a("ds_write_b64 v33, v[36:37]", "tag for the other helpers")
    a.c("q = sum of the four quarters (tag bits masked off), rounded to bf16; column 64*(4*q2 + g) + 16*ct + j")
    a("v_lshlrev_b32 v8, 7, v3"); a("v_lshl_add_u32 v8, v2, 1, v8"); a(f"v_add_u32 v8, {Q_LDS}, v8")
    for gi in range(8):
        for ct in range(4): a(f"v_and_b32 v{G+4*gi+ct}, s32, v{G+4*gi+ct}")
    for q2 in range(2):
        for ct in range(4):
            a(f"v_add_f32 v{32+4*q2+ct}, v{G+(0*2+q2)*4+ct}, v{G+(1*2+q2)*4+ct}")
            a(f"v_add_f32 v{40+4*q2+ct}, v{G+(2*2+q2)*4+ct}, v{G+(3*2+q2)*4+ct}")
    for k in range(8): a(f"v_add_f32 v{32+k}, v{32+k}, v{40+k}")
    for k in range(4): a(f"v_cvt_pk_bf16_f32 v{48+k}, v{32+2*k}, v{33+2*k}")
    for q2 in range(2):
        for h in range(2):
            a(f"ds_write_b16 v8, v{48+2*q2+h} offset:{q2*512 + h*64}")
            a(f"ds_write_b16_d16_hi v8, v{48+2*q2+h} offset:{q2*512 + h*64 + 32}")
    a("s_waitcnt lgkmcnt(0)")
    a("s_branch L_hb1")
    a.label("L_not_w0")
    if CODEPF:
        a.c("one wave pulls 1/32 of this kernel's code through L2 (the 32 workgroups of an XCD cover all of it; speed only:")
        a.c("instruction fetches then miss to L2 instead of HBM)")
        a(f"s_cmp_eq_u32 s3, {CODEPF_WAVE}"); a("s_cbranch_scc0 L_nopf")
        a("s_getpc_b64 s[60:61]")
        a.label("L_pc")
        a(f"s_sub_u32 s60, s60, L_pc-{KNAME}"); a("s_subb_u32 s61, s61, 0")
        a(f"s_mul_i32 s62, s21, {CODEPF*128}")
        a("v_lshl_add_u32 v8, v1, 7, s62")
        a(f"v_min_u32 v8, L_end-{KNAME}, v8", "stay inside the code")
        a(f"s_mov_b64 exec, {(1 << CODEPF) - 1:#x}")
        a("global_load_dword v9, v8, s[60:61]")
        a("s_mov_b64 exec, -1")
        a.label("L_nopf")
    a("s_waitcnt lgkmcnt(0)")
    a("s_barrier", "B0")
    a.label("L_hb1")
    a(f"v_mov_b32 v16, {FLG}"); a("v_mov_b32 v17, 0")
    a("ds_write_b32 v16, v17")
    a("s_waitcnt lgkmcnt(0)")
    a("s_barrier", "B1: q, tag and XCD flag are in LDS")
    a(f"v_mov_b32 v16, {XFLG}")
    a("ds_read_b32 v17, v16")
    a(f"v_mov_b32 v10, {TAGL}")
    a("ds_read_b64 v[12:13], v10")
    a("s_waitcnt lgkmcnt(0)")
    a("v_readfirstlane_b32 s37, v17")
    a("v_readfirstlane_b32 s44, v12")
    a("v_readfirstlane_b32 s45, v13")
    a.c("---- wo fragments: wave h owns columns [128h, 128h+128) (wave 3: 64 columns) of rows [rho*128, +128)")
    F, T, ACC = 128, 96, 64
    a("s_mov_b32 s24, s12"); a("s_mov_b32 s25, s13"); a("s_mov_b32 s26, 3670016"); a("s_mov_b32 s27, 0x20000", "SRD wo")
    a("v_mul_u32_u24 v46, 7168, v3")
    a("s_lshl_b32 s42, s3, 8")
    a("v_lshl_add_u32 v46, v2, 4, v46")
    a("v_add_u32 v46, s42, v46")
    a("v_add_u32 v47, 3584, v46")
    a("s_lshl_b32 s33, s41, 7")
    a("s_mul_i32 s33, s33, 896")
    a("s_mov_b32 s50, 0x05040100"); a("s_mov_b32 s51, 0x07060302")
    a("s_mov_b32 s52, -1"); a("s_mov_b32 s53, -1")
    a("s_cmp_eq_u32 s3, 3")
    a("s_cselect_b32 s52, 0x00ff00ff, s52"); a("s_cselect_b32 s53, 0x00ff00ff, s53", "lanes that carry columns")
    a.c("the 8 workgroups that share this slice first pull one row in eight through L2 each (speed only)")
    if SPF:
        a.c("scalar loads: they do not queue in front of the K / V stream.  Wave h takes rows b + 8m, m = 4h .. 4h+3, 7 lines each")
        a("s_mul_i32 s46, s22, 896"); a("s_add_u32 s46, s46, s33")
        a("s_mul_i32 s43, s3, 4*7168"); a("s_add_u32 s46, s46, s43")
        a("s_add_u32 s56, s12, s46"); a("s_addc_u32 s57, s13, 0")
        n_ = 0
        for m in range(4):
            for c_ in range(7):
                a(f"s_load_dword s{60+n_}, s[56:57], {m*7168 + c_*128}"); n_ += 1
        a("s_waitcnt lgkmcnt(0)")
    else:
        a("s_mul_i32 s46, s22, 896"); a("s_add_u32 s46, s46, s33")
        a("s_mov_b64 exec, s[52:53]")
        for ks in range(4):
            a(f"s_add_u32 s43, s46, {ks*32*896}")
            a(f"buffer_load_dwordx4 {vr(T+4*ks,4)}, v46, s[24:27], s43 offen")
        a("s_mov_b64 exec, -1")
        a("s_waitcnt vmcnt(0)")
    a(f"s_sleep {WOPF}")
    for ks in range(4):
        a(f"s_add_u32 s43, s33, {ks*32*896}")
        a("s_mov_b64 exec, s[52:53]")
        for e in range(8):
            a(f"buffer_load_dwordx4 {vr(T+4*e,4)}, v{46+(e>>2)}, s[24:27], s43 offen offset:{(e&3)*896}")
            if e % WOTHIN == WOTHIN - 1: a("s_waitcnt vmcnt(0)")
        a("s_mov_b64 exec, -1")
        for c in range(8):
            for q in range(4):
                a(f"v_perm_b32 v{F+ks*32+c*4+q}, v{T+4*(2*q+1)+(c>>1)}, v{T+4*(2*q)+(c>>1)}, s{50+(c&1)}")
    a.c("---- addresses of the tail: v4..v7 PART reads, v8 ML read, v9 / v10 hop-1 publish (data / {max, sum}),")
    a.c("v11 / v12 hop-1 inbox, v13 / v14 OBUF write / read, v15 hop-2 publish")
    a("s_and_b32 s42, s3, 1"); a("s_lshl_b32 s42, s42, 10")
    a("s_lshr_b32 s43, s3, 1"); a("s_lshl_b32 s46, s43, 2")
    a("s_add_u32 s42, s42, s46"); a(f"s_add_u32 s42, s42, {PART}")
    a("v_lshl_add_u32 v4, v1, 4, s42")
    for w in range(1, 4): a(f"v_add_u32 v{4+w}, {w*2048}, v4")
    a("s_lshl_b32 s46, s43, 3"); a(f"s_add_u32 s46, s46, {ML}")
    a("v_mov_b32 v8, s46")
    a("s_lshl_b32 s43, s40, 2")
    a("s_add_u32 s42, s43, s3"); a("s_lshl_b32 s42, s42, 2"); a("s_add_u32 s42, s42, s23")
    a(f"s_mul_i32 s42, s42, {H1SRC}"); a(f"s_add_u32 s42, s42, {H1BOX}")
    a("v_lshl_add_u32 v9, v1, 4, s42")
    a("s_add_u32 s42, s42, 1024"); a("v_and_b32 v10, 7, v1"); a("v_lshl_add_u32 v10, v10, 4, s42")
    a("s_add_u32 s42, s43, s23"); a(f"s_mul_i32 s42, s42, {4*H1SRC}"); a(f"s_add_u32 s42, s42, {H1BOX}")
    a(f"v_mul_u32_u24 v11, {H1SRC}, v3"); a("v_add_u32 v11, s42, v11")
    a("v_add_u32 v12, 1024, v11")
    a("s_lshl_b32 s46, s3, 8"); a("v_lshl_add_u32 v11, v2, 4, v11"); a("v_add_u32 v11, s46, v11")
    a("s_lshl_b32 s42, s3, 6"); a(f"s_add_u32 s42, s42, {OBUF}")
    a("v_lshl_add_u32 v13, v2, 2, s42")
    a("v_lshlrev_b32 v14, 4, v3"); a(f"v_add_u32 v14, {OBUF}, v14")
    a.c("hop-2 publish: ((b*32 + 8h + (j>>1))*32 + rho)*128 + ((j&1)*4 + g)*16")
    a("s_lshl_b32 s42, s22, 5"); a("s_lshl_b32 s43, s3, 3"); a("s_add_u32 s42, s42, s43")
    a("v_lshrrev_b32 v15, 1, v2"); a("v_add_u32 v15, s42, v15")
    a("v_lshlrev_b32 v15, 5, v15"); a("v_add_u32 v15, s41, v15"); a("v_lshlrev_b32 v15, 7, v15")
    a("v_and_b32 v16, 1, v2"); a("v_lshl_add_u32 v16, v16, 2, v3"); a("v_lshl_add_u32 v15, v16, 4, v15")
    a(f"v_add_u32 v15, {H2BOX}, v15")
    a("v_and_b32 v16, 1, v3"); a("v_cmp_eq_u32 s[54:55], 1, v16", "g & 1")
    a("v_cmp_le_u32 s[48:49], 2, v3", "g >= 2")
    a.c("wave 1 touches the hop-1 inbox lines shortly before the stream ends (speed only: they are then in this XCD's L2)")
    a("s_cmp_eq_u32 s3, 1"); a("s_cbranch_scc0 L_lw2")
    a(f"v_mov_b32 v16, {FLG}")
    a("s_mov_b32 s47, 0")
    a.label("L_lwpoll")
    a("ds_read_b32 v17, v16")
    a("s_add_u32 s47, s47, 1")
    a(f"s_cmp_gt_u32 s47, {SPIN_MAX*4}")
    a("s_cbranch_scc1 L_lwgo")
    a("s_waitcnt lgkmcnt(0)")
    a("v_readfirstlane_b32 s46, v17")
    a.nop(1)
    a("s_cmp_lg_u32 s46, 0")
    a("s_cbranch_scc1 L_lwgo")
    a("s_sleep 8")
    a("s_branch L_lwpoll")
    a.label("L_lwgo")
    a("s_waitcnt lgkmcnt(0)")
    a("s_lshl_b32 s42, s40, 2"); a("s_add_u32 s42, s42, s23"); a(f"s_mul_i32 s42, s42, {4*H1SRC}"); a(f"s_add_u32 s42, s42, {H1BOX}")
    if SWARM:
        a("s_cmp_eq_u32 s37, 1"); a("s_cbranch_scc0 L_lwv")
        a("s_add_u32 s56, s18, s42"); a("s_addc_u32 s57, s19, 0")
        for n_ in range(36):
            a(f"s_load_dword s{60 + n_ % 28}, s[56:57], {n_*128}")
            if n_ == 27: a("s_waitcnt lgkmcnt(0)")
        a("s_waitcnt lgkmcnt(0)")
        a("s_branch L_lw2")
        a.label("L_lwv")
    a("v_lshl_add_u32 v16, v1, 4, s42")
    for q in range(4): a(f"global_load_dwordx4 {vr(96+4*q,4)}, v16, s[18:19] offset:{q*1024} sc1")
    a("s_mov_b64 exec, 0xffffffff")
    a("v_add_u32 v16, 4096, v16")
    a(f"global_load_dwordx4 {vr(112,4)}, v16, s[18:19] sc1")
    a("s_mov_b64 exec, -1")
    a("s_waitcnt vmcnt(0)")
    a.label("L_lw2")
    a("v_mov_b32 v50, s44"); a("v_mov_b32 v51, s45"); a("v_mov_b32 v54, s44"); a("v_mov_b32 v55, s45")
    a("v_mov_b32 v58, s44"); a("v_mov_b32 v59, s45", "tag words of the granules that are published")
    a("s_barrier", "B2: the streamers' partials are in LDS")
    a.c("---- merge the four streamers: wave h forms quarter h (head h>>1, dims (h&1)*128 + 2*lane, +1)")
    for w in range(4):
        a(f"ds_read_b64 {vr(16+w*2,2)}, v8 offset:{w*16}")
    for w in range(4):
        a(f"ds_read2_b32 {vr(24+w*2,2)}, v{4+w} offset0:0 offset1:2")
    a("s_waitcnt lgkmcnt(4)")
    a("v_max3_f32 v52, v16, v18, v20"); a("v_max_f32 v52, v52, v22")
    for w in range(4): a(f"v_sub_f32 v{32+w}, v{16+w*2}, v52")
    for w in range(4): a(f"v_exp_f32 v{32+w}, v{32+w}")
    a("s_waitcnt lgkmcnt(0)")
    a("v_mul_f32 v48, v32, v24"); a("v_mul_f32 v49, v32, v25"); a("v_mul_f32 v53, v32, v17")
    for w in range(1,4):
        a(f"v_fmac_f32 v48, v{32+w}, v{24+2*w}"); a(f"v_fmac_f32 v49, v{32+w}, v{25+2*w}")
        a(f"v_fmac_f32 v53, v{32+w}, v{17+2*w}")
    def h1_publish(pol):
        a("global_store_dwordx4 v9, v[48:51], s[18:19]" + pol)
        a("s_mov_b64 exec, 0xff")
        a("global_store_dwordx4 v10, v[52:55], s[18:19]" + pol)
        a("s_mov_b64 exec, -1")
    a("s_cmp_eq_u32 s37, 1"); a("s_cbranch_scc1 L_h1fast")
    h1_publish(" sc1")
    a(f"s_sleep {H1SLOW}")
    a("s_branch L_h1pub")
    a.label("L_h1fast")
    h1_publish("")
    a(f"s_sleep {H1FAST}")
    a.label("L_h1pub")
    a.c("---- hop 1: gather the four splits of this workgroup's quarter.  Wave h takes k in [32h, 32h+32):")
    a.c("lane = (source g, pair j) -> one data granule and its source's {max, sum} granule")
    def h1_loads():
        a("global_load_dwordx4 v[16:19], v11, s[18:19] sc1")
        a("global_load_dwordx4 v[20:23], v12, s[18:19] sc1")
    def h1_check():
        a("v_xor_b32 v24, s44, v18"); a("v_xor_b32 v25, s45, v19"); a("v_xor_b32 v26, s44, v22"); a("v_xor_b32 v27, s45, v23")
        a("v_or3_b32 v24, v24, v25, v26"); a("v_or_b32 v24, v24, v27")
        a("v_cmp_ne_u32 vcc, 0, v24")
    poll("h1", h1_loads, h1_check)
    a.c("M = max over the four sources (lanes l, l^16, l^32, l^48); o = sum f*o / sum f*l")
    a("v_mov_b32 v24, v20"); a("v_mov_b32 v25, v20"); a.nop(2)
    a("v_permlane16_swap_b32 v24, v25"); a.nop(1)
    a("v_max_f32 v24, v24, v25"); a("v_mov_b32 v25, v24"); a.nop(2)
    a("v_permlane32_swap_b32 v24, v25"); a.nop(1)
    a("v_max_f32 v24, v24, v25")
    a("v_sub_f32 v24, v20, v24")
    a("v_exp_f32 v24, v24")
    a.nop(1)
    a("v_mul_f32 v28, v24, v21"); a("v_mul_f32 v29, v24, v16"); a("v_mul_f32 v30, v24, v17")
    for k in range(3): a(f"v_mov_b32 v{32+k}, v{28+k}")
    a.nop(1)
    for k in range(3): a(f"v_permlane16_swap_b32 v{28+k}, v{32+k}")
    a.nop(1)
    for k in range(3): a(f"v_add_f32 v{28+k}, v{28+k}, v{32+k}")
    for k in range(3): a(f"v_mov_b32 v{32+k}, v{28+k}")
    a.nop(1)
    for k in range(3): a(f"v_permlane32_swap_b32 v{28+k}, v{32+k}")
    a.nop(1)
    for k in range(3): a(f"v_add_f32 v{28+k}, v{28+k}, v{32+k}")
    a("v_rcp_f32 v28, v28")
    a.nop(1)
    a("v_mul_f32 v29, v29, v28"); a("v_mul_f32 v30, v30, v28")
    a("v_cvt_pk_bf16_f32 v29, v29, v30")
    a("s_mov_b64 exec, 0xffff")
    a("ds_write_b32 v13, v29")
    a("s_mov_b64 exec, -1")
    a("s_waitcnt lgkmcnt(0)")
    a("s_barrier", "B3 (helpers only: the streamers have ended)")
    a.c("---- y = o quarter @ wo rows")
    for ks in range(4):
        a(f"ds_read_b128 {vr(16+ks*4,4)}, v14 offset:{ks*64}")
    for ks in range(4):
        a(f"s_waitcnt lgkmcnt({3-ks})")
        for c in range(8):
            cc = "0" if ks == 0 else vr(ACC+4*c,4)
            a(f"v_mfma_f32_16x16x32_bf16 {vr(ACC+4*c,4)}, {vr(16+ks*4,4)}, {vr(F+ks*32+c*4,4)}, {cc}")
    a.c("lane (j, g) publishes columns 128h + 8j + 2g, + 1")
    a.nop(5)
    a(f"v_cndmask_b32 v60, v{ACC+0}, v{ACC+8}, s[54:55]"); a(f"v_cndmask_b32 v61, v{ACC+4}, v{ACC+12}, s[54:55]")
    a.nop(1)
    a(f"v_cndmask_b32 v62, v{ACC+16}, v{ACC+24}, s[54:55]")
    a.nop(2)
    a(f"v_cndmask_b32 v63, v{ACC+20}, v{ACC+28}, s[54:55]")
    a("v_cndmask_b32 v56, v60, v62, s[48:49]"); a("v_cndmask_b32 v57, v61, v63, s[48:49]")
    a("s_mov_b64 exec, s[52:53]")
    a("global_store_dwordx4 v15, v[56:59], s[18:19] sc1")
    a("s_mov_b64 exec, -1")
    a.c("---- hop 2: wave 0 of the workgroups with rho < 28 sums 16 output columns over the 32 workgroups of this batch")
    a("s_cmp_eq_u32 s3, 0"); a("s_cbranch_scc0 L_end")
    a("s_cmp_lt_u32 s41, 28"); a("s_cbranch_scc0 L_end")
    a("s_lshl_b32 s42, s22, 5"); a("s_add_u32 s42, s42, s41"); a("s_lshl_b32 s42, s42, 12")
    a(f"s_add_u32 s42, s42, {H2BOX}")
    a("v_lshl_add_u32 v6, v1, 4, s42")
    a(f"s_sleep {H2DELAY}")
    def h2_loads():
        for q in range(4):
            a(f"global_load_dwordx4 {vr(16+4*q,4)}, v6, s[18:19] offset:{q*1024} sc1")
    def h2_check():
        a("v_xor_b32 v32, s44, v18"); a("v_xor_b32 v33, s45, v19"); a("v_or_b32 v32, v32, v33")
        for q in range(1, 4):
            a(f"v_xor_b32 v33, s44, v{16+4*q+2}"); a(f"v_xor_b32 v34, s45, v{16+4*q+3}"); a("v_or3_b32 v32, v32, v33, v34")
        if EXPBY: a("v_cndmask_b32 v32, v32, 0, s[66:67]")
        a("v_cmp_ne_u32 vcc, 0, v32")
    if EXPBY:
        a("s_and_b32 s46, s41, 7"); a("v_lshrrev_b32 v33, 3, v1"); a("v_cmp_eq_u32 s[66:67], s46, v33"); a.nop(2)
    poll("h2", h2_loads, h2_check)
    for k in range(2): a(f"v_add_f32 v{16+k}, v{16+k}, v{20+k}"); a(f"v_add_f32 v{24+k}, v{24+k}, v{28+k}")
    for k in range(2): a(f"v_add_f32 v{16+k}, v{16+k}, v{24+k}")
    a.nop(2)
    for k in range(2): a(f"v_add_f32_dpp v{20+k}, v{16+k}, v{16+k} row_ror:8 row_mask:0xf bank_mask:0xf")
    for k in range(2): a(f"v_mov_b32 v{16+k}, v{20+k}")
    a.nop(2)
    for k in range(2): a(f"v_permlane16_swap_b32 v{16+k}, v{20+k}")
    a.nop(2)
    for k in range(2): a(f"v_add_f32 v{16+k}, v{16+k}, v{20+k}")
    for k in range(2): a(f"v_mov_b32 v{20+k}, v{16+k}")
    a.nop(2)
    for k in range(2): a(f"v_permlane32_swap_b32 v{16+k}, v{20+k}")
    a.nop(2)
    for k in range(2): a(f"v_add_f32 v{16+k}, v{16+k}, v{20+k}")
    a("v_cvt_pk_bf16_f32 v24, v16, v17")
    a("s_mul_i32 s42, s22, 896"); a("s_lshl_b32 s43, s41, 5"); a("s_add_u32 s42, s42, s43")
    a("v_lshl_add_u32 v6, v1, 2, s42")
    a("s_mov_b64 exec, 0xff")
    a("global_store_dword v6, v24, s[14:15]", "out[b][16*rho + 2*lane, +1]")
    if DIAGCNT:
        a("s_and_b32 s70, s2, 7"); a("s_lshr_b32 s71, s2, 3"); a("s_mul_i32 s72, s70, 5"); a("s_cmp_eq_u32 s71, s72"); a("s_cbranch_scc0 L_nodc")
        a("s_cmp_lt_u32 s70, 5"); a("s_cbranch_scc0 L_nodc")
        a("s_mul_i32 s72, s70, 12"); a("s_mov_b64 exec, 1")
        a("v_mov_b32 v40, s72"); a("v_mov_b32 v41, s60"); a("v_mov_b32 v42, s61"); a("v_mov_b32 v43, s62")
        a("v_add_u32 v41, 100, v41"); a("v_add_u32 v42, 100, v42"); a("v_add_u32 v43, 100, v43")
        a("global_store_dword v40, v41, s[16:17]"); a("global_store_dword v40, v42, s[16:17] offset:4"); a("global_store_dword v40, v43, s[16:17] offset:8")
        a.label("L_nodc")
    a.c("workgroup 0 advances the epoch word: its last gather depends on every workgroup having read the old one")
    a("s_or_b32 s46, s41, s22"); a("s_cmp_lg_u32 s46, 0")
    a("s_cbranch_scc1 L_end")
    a(f"s_mov_b32 s46, {EPOCH}")
    a("s_mov_b64 exec, 1")
    a("v_mov_b32 v10, s46"); a("v_mov_b32 v12, s44"); a("v_mov_b32 v13, s45")
    a("global_store_dwordx2 v10, v[12:13], s[18:19] sc1")
    a("s_branch L_end")

    if STREAM_FIRST: a.raw("@@B")
    a.c("==================== streamers ====================")
    a.label("L_stream")
    KOFF, VOFF, KRD, VRD = 4, 12, 16, 20
    QF, FR, S, O, LA, ONES, P, TMP = 28, 60, 92, 156, 220, 224, 226, 228
    VM, VMC = 232, 233
    a("s_sub_u32 s3, s3, 4", "w")
    a("s_lshl_b32 s40, s22, 3"); a("s_add_u32 s40, s40, s20"); a("s_lshl_b32 s40, s40, 21")
    a("s_lshl_b32 s41, s23, 19"); a("s_add_u32 s40, s40, s41", "byte offset of this split in K / V")
    a("s_lshl_b32 s41, s3, 12", "w*4096: the waves interleave at 4 KiB")
    a("s_lshl_b32 s42, s3, 15", "ring base")
    a.c("DMA offsets: hi*512 + ((L&31) ^ swizzle(row))*16; K: swizzle = row & 15, V: (row & 7) << 1")
    a("v_lshrrev_b32 v234, 5, v1")
    a("v_and_b32 v235, 31, v1")
    for n in range(8):
        a(f"v_add_u32 v236, {2*n}, v234")
        a("v_xor_b32 v236, v236, v235")
        a("v_lshlrev_b32 v236, 4, v236")
        a(f"v_lshl_add_u32 v{KOFF+n}, v234, 9, v236")
    a("s_waitcnt lgkmcnt(0)")
    a("s_add_u32 s24, s6, s40"); a("s_addc_u32 s25, s7, 0"); a("s_mov_b32 s26, 0x80000"); a("s_mov_b32 s27, 0x20000", "SRD K")
    a("s_add_u32 s28, s8, s40"); a("s_addc_u32 s29, s9, 0"); a("s_mov_b32 s30, 0x80000"); a("s_mov_b32 s31, 0x20000", "SRD V")

    RU, NU = 4*UPT, 32*UPT
    queue = []
    state = {"x": 0}
    def issue():
        x = state["x"]; e = x // UPT; u = x % UPT; t = e & 15
        per = 8 // UPT
        hf = (u*per) >> 2
        isK = e < 16
        a(f"s_add_u32 m0, s42, {(e & 3)*8192 + hf*4096}")
        a(f"s_add_u32 s43, s41, {t*32768 + hf*16384}")
        for n in range(u*per, (u+1)*per):
            nn = n & 3
            voff = KOFF + n if isK else VOFF + nn
            srd = "s[24:27]" if isK else "s[28:31]"
            a(f"buffer_load_dwordx4 v{voff}, {srd}, s43 offen offset:{nn*1024}{KPOL if isK else VPOL} lds")
            queue.append(x)
        state["x"] = x + 1
        if x + 1 == LATEWARM:
            a("s_cmp_lg_u32 s3, 0"); a("s_cbranch_scc1 L_noflag")
            a(f"v_mov_b32 v243, {FLG}"); a("v_mov_b32 v244, 1"); a("ds_write_b32 v243, v244")
            a.label("L_noflag")
    def wait_unit(h):
        if h < 0 or h not in queue: return
        last = max(i for i, v in enumerate(queue) if v == h)
        a(f"s_waitcnt vmcnt({len(queue) - 1 - last})")
        del queue[:last+1]
    a("s_barrier", "B0: behind the q loads")
    while state["x"] < WI: issue()
    a.c("remaining address tables (computed while the first loads fly)")
    for nn in range(4):
        a(f"v_add_u32 v236, {2*nn}, v234")
        a("v_lshlrev_b32 v236, 1, v236")
        a("v_xor_b32 v236, v236, v235")
        a("v_lshlrev_b32 v236, 4, v236")
        a(f"v_lshl_add_u32 v{VOFF+nn}, v234, 9, v236")
    a.c("K reads: ring + i*512 + ((4c+g)^i)*16")
    a("v_lshl_add_u32 v237, v2, 9, s42")
    for c in range(4):
        a(f"v_add_u32 v236, {4*c}, v3")
        a("v_xor_b32 v236, v236, v2")
        a(f"v_lshl_add_u32 v{KRD+c}, v236, 4, v237")
    a.c("V reads (transposing): ring + row*512 + ((2dt + (c4>>1)) ^ ((row&7)<<1))*16 + (c4&1)*8, row = 4g + (j>>2), c4 = j&3")
    a("v_lshrrev_b32 v236, 2, v2")
    a("v_lshl_add_u32 v236, v3, 2, v236")
    a("v_lshl_add_u32 v237, v236, 9, s42")
    a("v_and_b32 v238, 1, v2"); a("v_lshl_add_u32 v237, v238, 3, v237")
    a("v_and_b32 v236, 7, v236"); a("v_lshlrev_b32 v236, 1, v236")
    a("v_bfe_u32 v238, v2, 1, 1")
    for dt in range(8):
        a(f"v_add_u32 v239, {2*dt}, v238")
        a("v_xor_b32 v239, v239, v236")
        a(f"v_lshl_add_u32 v{VRD+dt}, v239, 4, v237")
    a(f"v_mov_b32 v{ONES}, 0x3f803f80"); a(f"v_mov_b32 v{ONES+1}, 0x3f803f80")
    a(f"v_mov_b32 v{VM}, 0xff800000")
    a(f"s_mov_b32 s44, {f2u(C_SCALE):#x}", "log2(e) / sqrt(Dh)")
    a("v_and_b32 v236, 1, v2"); a("v_lshlrev_b32 v236, 9, v236"); a("v_lshl_add_u32 v236, v3, 4, v236")
    a(f"v_add_u32 v240, {Q_LDS}, v236", "q fragments: column j holds head j & 1")
    a("s_lshl_b32 s45, s3, 11"); a(f"s_add_u32 s45, s45, {PART}")
    a("v_lshl_add_u32 v241, v2, 3, s45")
    a("s_lshl_b32 s45, s3, 4"); a(f"s_add_u32 s45, s45, {ML}")
    a("v_lshl_add_u32 v242, v2, 3, s45")

    REGBUF = [O, O+32, S+32][:NREG]
    def lds_read(e, base):
        isK = e < 16; slot = e & 3
        if isK:
            for c in range(8):
                a(f"ds_read_b128 {vr(base+4*c,4)}, v{KRD+(c&3)} offset:{slot*8192 + (c>>2)*256}")
        else:
            for dt in range(16):
                a(f"ds_read_b64_tr_b16 {vr(base+2*dt,2)}, v{VRD+(dt&7)} offset:{slot*8192 + (dt>>3)*256}")
    def k_mfma(t, base):
        for c in range(8):
            cc = "0" if c == 0 else vr(S+4*t,4)
            a(f"v_mfma_f32_16x16x32_bf16 {vr(S+4*t,4)}, {vr(base+4*c,4)}, {vr(QF+4*c,4)}, {cc}")
        if t > 0:
            a(f"v_max3_f32 v{VM}, v{VM}, v{S+4*(t-1)}, v{S+4*(t-1)+1}")
            a(f"v_max3_f32 v{VM}, v{VM}, v{S+4*(t-1)+2}, v{S+4*(t-1)+3}")
        if t == 15:
            a.c("true maximum of this wave's 256 scores per head")
            a.nop(8)
            a(f"v_max3_f32 v{VM}, v{VM}, v{S+60}, v{S+61}")
            a(f"v_max3_f32 v{VM}, v{VM}, v{S+62}, v{S+63}")
            a(f"v_mov_b32 v{TMP}, v{VM}"); a.nop(2)
            a(f"v_permlane16_swap_b32 v{VM}, v{TMP}"); a.nop(2)
            a(f"v_max_f32 v{VM}, v{VM}, v{TMP}")
            a(f"v_mov_b32 v{TMP}, v{VM}"); a.nop(2)
            a(f"v_permlane32_swap_b32 v{VM}, v{TMP}"); a.nop(2)
            a(f"v_max_f32 v{VM}, v{VM}, v{TMP}")
            a(f"v_mul_f32 v{VMC}, s44, v{VM}")
    def p_calc(t):
        for r in range(4): a(f"v_fma_f32 v{TMP+r}, v{S+4*t+r}, s44, -v{VMC}")
        for r in range(4): a(f"v_exp_f32 v{TMP+r}, v{TMP+r}")
        a.nop(1)
        a(f"v_cvt_pk_bf16_f32 v{P}, v{TMP}, v{TMP+1}"); a(f"v_cvt_pk_bf16_f32 v{P+1}, v{TMP+2}, v{TMP+3}")
    def v_mfma(t, part, last=False):
        if part == 0:
            cc = "0" if t == 0 else vr(LA,4)
            a(f"v_mfma_f32_16x16x16_bf16 {vr(LA,4)}, {vr(P,2)}, {vr(ONES,2)}, {cc}")
        for dt in range(8*part, 8*part+8):
            if last: a(f"s_waitcnt lgkmcnt({15-dt})")
            cc = "0" if t == 0 else vr(O+4*dt,4)
            a(f"v_mfma_f32_16x16x16_bf16 {vr(O+4*dt,4)}, {vr(P,2)}, {vr(FR+2*dt,2)}, {cc}")
    a.c("head: the ring is filled under the window rule; the first tiles move on into registers to free their slots")
    while state["x"] < RU + UPT*NREG:
        x = state["x"]
        if x >= RU and x % UPT == 0:
            e = (x - RU)//UPT
            for u_ in range(UPT): wait_unit(UPT*e + u_)
            lds_read(e, REGBUF[e])
            a("s_waitcnt lgkmcnt(0)")
        wait_unit(x - WH)
        issue()
    a("s_barrier", "B1: q is in LDS")
    for c in range(8):
        a(f"ds_read_b128 {vr(QF+4*c,4)}, v240 offset:{c*64}")
    pending = None
    for e in range(NREG, 32):
        isK = e < 16; t = e & 15
        Wc = WMID[2] if (WMID[2] and WMID[0] <= e <= WMID[1]) else W
        a.c(f"---- {'K' if isK else 'V'} tile {t} (the matrix work of the previous tile runs between the waits)")
        for n_, hx in enumerate(range(UPT*e, UPT*(e+1))):
            wait_unit(hx)
            while state["x"] < min(hx + 1 + Wc, NU) and state["x"] - RU < UPT*e:
                issue()
            if pending is not None:
                pe = pending; pt = pe & 15
                if n_ == 0:
                    if pe < 16:
                        if pe == NREG:
                            for e2 in range(NREG): k_mfma(e2, REGBUF[e2])
                        k_mfma(pt, FR)
                    else: v_mfma(pt, 0)
                if n_ == 1:
                    if pe >= 16: v_mfma(pt, 1)
                    pending = None
            if n_ == 2 and not isK:
                p_calc(t)
        lds_read(e, FR)
        if e != 31:
            a("s_waitcnt lgkmcnt(0)")
            x = state["x"]
            if x < NU and x - RU < UPT*(e+1):
                if x > UPT*(e+1) + Wc:
                    for _ in range(UPT//2):
                        wait_unit(state["x"] - Wc); issue()
                else:
                    while state["x"] < min(UPT*(e+1) + Wc, NU):
                        wait_unit(state["x"] - Wc); issue()
            pending = e
        else:
            v_mfma(t, 0, True); v_mfma(t, 1, True)
    assert state["x"] == NU and not queue
    a.c("---- partials -> LDS: {max, sum} per head, O[d][head]")
    a("v_cmp_eq_u32 vcc, 1, v2")
    a.nop(2)
    a(f"v_cndmask_b32 v{TMP+1}, v{LA}, v{LA+1}, vcc")
    a(f"v_mov_b32 v{TMP}, v{VMC}")
    a("s_mov_b64 exec, 3")
    a(f"ds_write_b64 v242, {vr(TMP,2)}")
    a("s_mov_b64 exec, 0xffff")
    for dt in range(16):
        if dt == 13: a.nop(2)
        a(f"ds_write_b64 v241, {vr(O+4*dt,2)} offset:{dt*128}")
    a("s_mov_b64 exec, -1")
    a("s_waitcnt lgkmcnt(0)")
    a("s_barrier", "B2")
    if STREAM_FIRST:
        a("s_endpgm")
        a.raw("@@C")
    a.label("L_end")
    a("s_endpgm")
    a.raw('.section .rodata,"a"')
    a.raw(".p2align 6")
    a.raw(f".amdhsa_kernel {KNAME}")
    a.raw("  .amdhsa_next_free_vgpr 256")
    a.raw("  .amdhsa_next_free_sgpr 96")
    a.raw("  .amdhsa_accum_offset 256")
    a.raw("  .amdhsa_group_segment_fixed_size 0")
    a.raw("  .amdhsa_kernarg_size 64")
    a.raw("  .amdhsa_user_sgpr_count 2")
    a.raw("  .amdhsa_user_sgpr_kernarg_segment_ptr 1")
    a.raw("  .amdhsa_system_sgpr_workgroup_id_x 1")
    if DENORM: a.raw("  .amdhsa_float_denorm_mode_32 3")
    a.raw(".end_amdhsa_kernel")
    t = a.text()
    if STREAM_FIRST:
        pre, rest = t.split("@@A\n"); helpers, rest = rest.split("@@B\n"); stream, post = rest.split("@@C\n")
        t = pre + stream + helpers + post
    return t

if __name__ == "__main__":
    from build import build
    name = sys.argv[1] if len(sys.argv) > 1 else "final"
    for arg in sys.argv[2:]:
        k, v = arg.split("=", 1)
        globals()[k] = eval(v)
    open(name + ".s", "w").write(gen())
    print(build(name + ".s"))
```

```python
import sys, math, struct

KNAME = "standalone__gqa_block_cached__decode_kernel"

RING      = 0
WQ_LDS    = 131072
Q_LDS     = WQ_LDS + 14336
PART      = Q_LDS + 1024
ML        = PART + 8192
OBUF      = ML + 64
FLG       = OBUF + 512
XFLG      = OBUF + 768
TAGL      = OBUF + 776
LDS_TOTAL = OBUF + 1024
QBOX  = 0
H1BOX = 0x100000
H1SRC = 1152
H2BOX = 0x220000
EPOCH = 0x320000
K1, K2 = 0x9E3779B9, 0x7F4A7C15
SPIN_MAX = 200000
C_SCALE = math.log2(math.e) / 16.0

WI, WH = 3, 3
UPT, W, NREG = 4, 3, 3
KPOL = VPOL = " sc0 sc1 nt"
WQPOL = " nt"
POLLDELAY, QSTAG, POLLSLEEP = 36, 24, 8
WOPF, WOTHIN = 32, 4
LATEWARM = 112
H1SLOW, H1FAST, H2DELAY = 12, 2, 12
DENORM = False
DIAGCNT = 0
EXPBY = 0
WMID = (0, 0, 0)
STREAM_FIRST = 0
CODEPF = 0
CODEPF_WAVE = 3
PERM = 0

def f2u(x): return struct.unpack("<I", struct.pack("<f", x))[0]

class Asm:
    def __init__(self): self.o = []
    def __call__(self, s, c=None): self.o.append("    " + s + (f"    ; {c}" if c else ""))
    def label(self, s): self.o.append(s + ":")
    def raw(self, s): self.o.append(s)
    def c(self, s):
        for l in s.strip("\n").split("\n"): self.o.append("    ; " + l)
    def nop(self, n):
        while n > 0:
            k = min(n, 16); self(f"s_nop {k-1}"); n -= k
    def text(self): return "\n".join(self.o) + "\n"

def vr(b, n=1): return f"v{b}" if n == 1 else f"v[{b}:{b+n-1}]"

HEADER = """\
"""

def gen():
    a = Asm()
    def poll(name, loads, check, sleep=0):
        a("s_mov_b32 s47, 0")
        a.label(f"L_{name}poll")
        loads()
        a("s_waitcnt vmcnt(0)")
        check()
        a(f"s_cbranch_vccz L_{name}done")
        if sleep: a(f"s_sleep {sleep}")
        a("s_add_u32 s47, s47, 1")
        a(f"s_cmp_le_u32 s47, {SPIN_MAX}")
        a(f"s_cbranch_scc1 L_{name}poll")
        a.label(f"L_{name}done")
        if DIAGCNT: a(f"s_mov_b32 s{ {'q':60,'h1':61,'h2':62}[name] }, s47")

    a.raw(HEADER.rstrip("\n"))
    a.raw(f"; @launch grid=(256,1,1) block=(512,1,1) lds={LDS_TOTAL}")
    a.raw('.amdgcn_target "amdgcn-amd-amdhsa--gfx950"')
    a.raw(".text")
    a.raw(f".globl {KNAME}")
    a.raw(".p2align 8")
    a.raw(f".type {KNAME},@function")
    a.label(KNAME)
    a("s_cmp_ge_u32 s2, 0x100", "extra workgroups leave at once")
    a("s_cbranch_scc1 L_end")
    a("s_load_dwordx16 s[4:19], s[0:1], 0", "x, k, v, wq, wo, out, debug, ws")
    if PERM == 1:
        a("s_lshl_b32 s3, s2, 3"); a("s_lshr_b32 s2, s2, 5"); a("s_or_b32 s2, s2, s3"); a("s_and_b32 s2, s2, 0xff")
    if PERM == 2:
        a("s_xor_b32 s3, s2, 1"); a("s_and_b32 s46, s2, 0xf8"); a("s_cmp_eq_u32 s46, 0x38"); a("s_cselect_b32 s2, s3, s2")
    a("v_lshrrev_b32 v2, 6, v0")
    a("v_and_b32 v1, 63, v0", "lane")
    a("s_and_b32 s20, s2, 7", "hkv")
    a("s_lshr_b32 s21, s2, 3", "r")
    a("v_readfirstlane_b32 s3, v2", "wave")
    a("s_lshr_b32 s22, s21, 2", "batch")
    a("s_and_b32 s23, s21, 3", "split")
    a("v_and_b32 v2, 15, v1", "i / j = lane & 15")
    a("v_lshrrev_b32 v3, 4, v1", "g = lane >> 4")
    if STREAM_FIRST:
        a("s_cmp_lt_u32 s3, 4")
        a("s_cbranch_scc1 L_help")
        a.raw("@@A")
        a.label("L_help")
    else:
        a("s_cmp_ge_u32 s3, 4")
        a("s_cbranch_scc1 L_stream")

    a.c("==================== helpers ====================")
    a("s_lshl_b32 s40, s22, 3"); a("s_add_u32 s40, s40, s20", "pair = b*8 + hkv")
    a("s_lshl_b32 s41, s20, 2"); a("s_add_u32 s41, s41, s23", "rho = hkv*4 + split")
    a("s_cmp_eq_u32 s3, 0")
    a("s_cbranch_scc0 L_not_w0")
    a.c("---- wave 0: partial q = x[8][112 rows of quarter 'split'] @ wq[those rows][64 columns of block b of this hkv]")
    a.c("x fragment offsets: (i&7)*896 + split*224 + g*8 (+ ks*32)")
    a("v_and_b32 v4, 7, v2")
    a("v_mul_u32_u24 v4, 896, v4")
    a("v_lshl_add_u32 v4, v3, 3, v4")
    a("s_mul_i32 s43, s23, 224")
    a("v_add_u32 v4, s43, v4")
    a.c("wq DMA offsets: (L>>3)*8192 + ((L&7) ^ (((L>>4)&3)<<1))*16")
    a("v_lshrrev_b32 v5, 3, v1"); a("v_lshlrev_b32 v5, 13, v5")
    a("v_and_b32 v6, 7, v1"); a("v_lshlrev_b32 v8, 1, v3"); a("v_xor_b32 v6, v6, v8")
    a("v_lshl_add_u32 v5, v6, 4, v5")
    a("s_mul_i32 s42, s23, 112*8192"); a("s_lshl_b32 s43, s20, 10"); a("s_add_u32 s42, s42, s43")
    a("s_lshl_b32 s43, s22, 7"); a("s_add_u32 s42, s42, s43")
    a(f"v_mov_b32 v7, {EPOCH}")
    a.c("publish offset: QBOX + (((hkv*8 + batch)*4 + kq)*128 + b*16 + j)*16, batch = 4*(g&1) + 2*(g>>1) + store")
    a("v_and_b32 v8, 1, v3"); a("v_lshlrev_b32 v8, 2, v8")
    a("v_lshrrev_b32 v9, 1, v3"); a("v_lshl_add_u32 v8, v9, 1, v8")
    a("s_lshl_b32 s48, s20, 3"); a("v_add_u32 v8, s48, v8")
    a("v_lshlrev_b32 v8, 2, v8"); a("v_add_u32 v8, s23, v8"); a("v_lshlrev_b32 v8, 7, v8")
    a("s_lshl_b32 s48, s22, 4"); a("v_add_u32 v8, s48, v8"); a("v_add_u32 v8, v8, v2")
    a("v_lshlrev_b32 v36, 4, v8")
    a("s_waitcnt lgkmcnt(0)")
    a("s_mov_b32 s24, s10"); a("s_mov_b32 s25, s11"); a("s_mov_b32 s26, 3670016"); a("s_mov_b32 s27, 0x20000", "SRD wq")
    for n in range(14):
        a(f"s_mov_b32 m0, {WQ_LDS + n*1024}")
        a(f"s_add_u32 s43, s42, {n*8*8192}")
        a(f"buffer_load_dwordx4 v5, s[24:27], s43 offen{WQPOL} lds")
    for ks in range(7):
        a(f"global_load_dwordx2 {vr(16+ks*2,2)}, v4, s[4:5] offset:{ks*32}")
    a("global_load_dwordx2 v[12:13], v7, s[18:19]", "epoch word (whatever an earlier launch left there)")
    a("s_barrier", "B0: these loads go ahead of the first K requests")
    a.c("transposed reads: WQ_LDS + row*128 + (((2ct + (c4>>1)) ^ (((row>>1)&3)<<1))*16 + (c4&1)*8, row = 4g + (j>>2), c4 = j&3")
    a("v_lshrrev_b32 v6, 2, v2")
    a("v_lshl_add_u32 v6, v3, 2, v6")
    a("v_lshlrev_b32 v8, 7, v6")
    a("v_and_b32 v9, 1, v2"); a("v_lshl_add_u32 v8, v9, 3, v8")
    a(f"v_add_u32 v8, {WQ_LDS}, v8")
    a("v_bfe_u32 v6, v6, 1, 2"); a("v_lshlrev_b32 v6, 1, v6")
    a("v_bfe_u32 v9, v2, 1, 1")
    for ct in range(4):
        a(f"v_add_u32 v10, {2*ct}, v9"); a("v_xor_b32 v10, v10, v6")
        a(f"v_lshl_add_u32 v{32+ct}, v10, 4, v8")
    a("v_cmp_gt_u32 s[50:51], 2, v3", "g < 2")
    a("s_waitcnt vmcnt(8)", "wq block is in LDS")
    for ks in range(7):
        for ct in range(4):
            a(f"ds_read_b64_tr_b16 {vr(72+(ks*4+ct)*2,2)}, v{32+ct} offset:{ks*2048}")
    a("s_waitcnt vmcnt(0)")
    a("v_readfirstlane_b32 s44, v12")
    a("v_readfirstlane_b32 s45, v13")
    a.nop(2)
    a(f"s_add_u32 s44, s44, {K1:#x}", "tag of this launch")
    a(f"s_add_u32 s45, s45, {K2:#x}")
    a("s_getreg_b32 s36, hwreg(HW_REG_XCC_ID, 0, 4)")
    a("s_waitcnt lgkmcnt(0)")
    QD = 128
    for ks in range(7):
        for ct in range(4):
            c = "0" if ks == 0 else vr(QD+4*ct,4)
            a(f"v_mfma_f32_16x16x16_bf16 {vr(QD+4*ct,4)}, {vr(16+ks*2,2)}, {vr(72+(ks*4+ct)*2,2)}, {c}")
    a.c("granule = 4 values (column tiles 0..3 at column j, rounded to 22 bits) with a 10-bit tag piece in the low bits of each word;")
    a.c("the last piece carries the XCD id in its low 4 bits")
    a("s_and_b32 s28, s44, 0x3ff"); a("s_bfe_u32 s29, s44, 0xa000a"); a("s_bfe_u32 s30, s44, 0xa0014")
    a("s_and_b32 s31, s45, 0x3f0")
    a("s_or_b32 s31, s31, s36")
    a("s_mov_b32 s32, 0xfffffc00")
    a.nop(6)
    for st in range(2):
        for ct in range(4):
            a(f"v_cndmask_b32 v{40+4*st+ct}, v{QD+4*ct+st+2}, v{QD+4*ct+st}, s[50:51]")
    for st in range(2):
        for ct in range(4):
            a(f"v_add_u32 v{40+4*st+ct}, 0x200, v{40+4*st+ct}")
    for ct in range(4):
        a(f"v_mov_b32 v{48+ct}, s{28+ct}")
    for st in range(2):
        for ct in range(4):
            a(f"v_and_or_b32 v{40+4*st+ct}, v{40+4*st+ct}, s32, v{48+ct}")
    for st in range(2):
        if st: a("v_add_u32 v36, 8192, v36")
        a(f"global_store_dwordx4 v36, {vr(40+4*st,4)}, s[18:19] sc1")
    G = 64
    a.c("gather the 4 x 128 granules of (hkv, b); load slot k takes quarter k ^ split (the sums pair {0,1} and {2,3}, so all four")
    a.c("splits add the same numbers the same way).  Slot 0 is fetched first: the other splits then find it in L2 (speed only).")
    a("s_lshl_b32 s48, s20, 3"); a("s_add_u32 s48, s48, s22"); a("s_lshl_b32 s48, s48, 13")
    a("v_lshl_add_u32 v12, v1, 4, s48")
    a("s_lshl_b32 s43, s23, 11")
    for k in range(4):
        a(f"s_xor_b32 s46, s43, {k*2048}"); a(f"v_add_u32 v{8+k}, s46, v12")
    a(f"s_sleep {POLLDELAY}", "reading the lines before they are written only slows the writers down")
    for q2 in range(2):
        a(f"global_load_dwordx4 {vr(G+q2*4,4)}, v8, s[18:19] offset:{q2*1024} sc1")
    a("s_waitcnt vmcnt(0)")
    a(f"s_sleep {QSTAG}")
    def q_loads():
        for k in range(4):
            for q2 in range(2):
                a(f"global_load_dwordx4 {vr(G+(k*2+q2)*4,4)}, v{8+k}, s[18:19] offset:{q2*1024} sc1")
    def q_check():
        for gi in range(8):
            b_ = G + 4*gi
            if gi == 0:
                a(f"v_xor_b32 v32, s28, v{b_}"); a(f"v_xor_b32 v33, s29, v{b_+1}"); a(f"v_xor_b32 v34, s30, v{b_+2}")
                a("v_or3_b32 v32, v32, v33, v34"); a(f"v_xor_b32 v35, s31, v{b_+3}")
            else:
                a(f"v_xor_b32 v33, s28, v{b_}"); a(f"v_xor_b32 v34, s29, v{b_+1}"); a("v_or3_b32 v32, v32, v33, v34")
                a(f"v_xor_b32 v33, s30, v{b_+2}"); a(f"v_xor_b32 v34, s31, v{b_+3}")
                a("v_or_b32 v32, v32, v33"); a("v_or_b32 v35, v35, v34")
        a("v_and_b32 v32, 0x3ff, v32"); a("v_and_b32 v35, 0x3ff, v35")
        a("v_and_b32 v33, 0x3f0, v35"); a("v_or_b32 v32, v32, v33")
        a("v_cmp_ne_u32 vcc, 0, v32")
    poll("q", q_loads, q_check, POLLSLEEP)
    a.c("do all 32 producers of this group sit on this XCD?")
    a("v_or_b32 v33, v32, v35")
    a("v_cmp_ne_u32 vcc, 0, v33")
    a("s_cmp_eq_u64 vcc, 0")
    a("s_cselect_b32 s36, 1, 0")
    a(f"v_mov_b32 v33, {XFLG}"); a("v_mov_b32 v36, s36")
    a("ds_write_b32 v33, v36")
    a(f"v_mov_b32 v33, {TAGL}"); a("v_mov_b32 v36, s44"); a("v_mov_b32 v37, s45")
    a("ds_write_b64 v33, v[36:37]", "tag for the other helpers")
    a.c("q = sum of the four quarters (tag bits masked off), rounded to bf16; column 64*(4*q2 + g) + 16*ct + j")
    a("v_lshlrev_b32 v8, 7, v3"); a("v_lshl_add_u32 v8, v2, 1, v8"); a(f"v_add_u32 v8, {Q_LDS}, v8")
    for gi in range(8):
        for ct in range(4): a(f"v_and_b32 v{G+4*gi+ct}, s32, v{G+4*gi+ct}")
    for q2 in range(2):
        for ct in range(4):
            a(f"v_add_f32 v{32+4*q2+ct}, v{G+(0*2+q2)*4+ct}, v{G+(1*2+q2)*4+ct}")
            a(f"v_add_f32 v{40+4*q2+ct}, v{G+(2*2+q2)*4+ct}, v{G+(3*2+q2)*4+ct}")
    for k in range(8): a(f"v_add_f32 v{32+k}, v{32+k}, v{40+k}")
    for k in range(4): a(f"v_cvt_pk_bf16_f32 v{48+k}, v{32+2*k}, v{33+2*k}")
    for q2 in range(2):
        for h in range(2):
            a(f"ds_write_b16 v8, v{48+2*q2+h} offset:{q2*512 + h*64}")
            a(f"ds_write_b16_d16_hi v8, v{48+2*q2+h} offset:{q2*512 + h*64 + 32}")
    a("s_waitcnt lgkmcnt(0)")
    a("s_branch L_hb1")
    a.label("L_not_w0")
    if CODEPF:
        a.c("one wave pulls 1/32 of this kernel's code through L2 (the 32 workgroups of an XCD cover all of it; speed only:")
        a.c("instruction fetches then miss to L2 instead of HBM)")
        a(f"s_cmp_eq_u32 s3, {CODEPF_WAVE}"); a("s_cbranch_scc0 L_nopf")
        a("s_getpc_b64 s[60:61]")
        a.label("L_pc")
        a(f"s_sub_u32 s60, s60, L_pc-{KNAME}"); a("s_subb_u32 s61, s61, 0")
        a(f"s_mul_i32 s62, s21, {CODEPF*128}")
        a("v_lshl_add_u32 v8, v1, 7, s62")
        a(f"v_min_u32 v8, L_end-{KNAME}, v8", "stay inside the code")
        a(f"s_mov_b64 exec, {(1 << CODEPF) - 1:#x}")
        a("global_load_dword v9, v8, s[60:61]")
        a("s_mov_b64 exec, -1")
        a.label("L_nopf")
    a("s_waitcnt lgkmcnt(0)")
    a("s_barrier", "B0")
    a.label("L_hb1")
    a(f"v_mov_b32 v16, {FLG}"); a("v_mov_b32 v17, 0")
    a("ds_write_b32 v16, v17")
    a("s_waitcnt lgkmcnt(0)")
    a("s_barrier", "B1: q, tag and XCD flag are in LDS")
    a(f"v_mov_b32 v16, {XFLG}")
    a("ds_read_b32 v17, v16")
    a(f"v_mov_b32 v10, {TAGL}")
    a("ds_read_b64 v[12:13], v10")
    a("s_waitcnt lgkmcnt(0)")
    a("v_readfirstlane_b32 s37, v17")
    a("v_readfirstlane_b32 s44, v12")
    a("v_readfirstlane_b32 s45, v13")
    a.c("---- wo fragments: wave h owns columns [128h, 128h+128) (wave 3: 64 columns) of rows [rho*128, +128)")
    F, T, ACC = 128, 96, 64
    a("s_mov_b32 s24, s12"); a("s_mov_b32 s25, s13"); a("s_mov_b32 s26, 3670016"); a("s_mov_b32 s27, 0x20000", "SRD wo")
    a("v_mul_u32_u24 v46, 7168, v3")
    a("s_lshl_b32 s42, s3, 8")
    a("v_lshl_add_u32 v46, v2, 4, v46")
    a("v_add_u32 v46, s42, v46")
    a("v_add_u32 v47, 3584, v46")
    a("s_lshl_b32 s33, s41, 7")
    a("s_mul_i32 s33, s33, 896")
    a("s_mov_b32 s50, 0x05040100"); a("s_mov_b32 s51, 0x07060302")
    a("s_mov_b32 s52, -1"); a("s_mov_b32 s53, -1")
    a("s_cmp_eq_u32 s3, 3")
    a("s_cselect_b32 s52, 0x00ff00ff, s52"); a("s_cselect_b32 s53, 0x00ff00ff, s53", "lanes that carry columns")
    a.c("the 8 workgroups that share this slice first pull one row in eight through L2 each (speed only)")
    a("s_mul_i32 s46, s22, 896"); a("s_add_u32 s46, s46, s33")
    a("s_mov_b64 exec, s[52:53]")
    for ks in range(4):
        a(f"s_add_u32 s43, s46, {ks*32*896}")
        a(f"buffer_load_dwordx4 {vr(T+4*ks,4)}, v46, s[24:27], s43 offen")
    a("s_mov_b64 exec, -1")
    a("s_waitcnt vmcnt(0)")
    a(f"s_sleep {WOPF}")
    for ks in range(4):
        a(f"s_add_u32 s43, s33, {ks*32*896}")
        a("s_mov_b64 exec, s[52:53]")
        for e in range(8):
            a(f"buffer_load_dwordx4 {vr(T+4*e,4)}, v{46+(e>>2)}, s[24:27], s43 offen offset:{(e&3)*896}")
            if e % WOTHIN == WOTHIN - 1: a("s_waitcnt vmcnt(0)")
        a("s_mov_b64 exec, -1")
        for c in range(8):
            for q in range(4):
                a(f"v_perm_b32 v{F+ks*32+c*4+q}, v{T+4*(2*q+1)+(c>>1)}, v{T+4*(2*q)+(c>>1)}, s{50+(c&1)}")
    a.c("---- addresses of the tail: v4..v7 PART reads, v8 ML read, v9 / v10 hop-1 publish (data / {max, sum}),")
    a.c("v11 / v12 hop-1 inbox, v13 / v14 OBUF write / read, v15 hop-2 publish")
    a("s_and_b32 s42, s3, 1"); a("s_lshl_b32 s42, s42, 10")
    a("s_lshr_b32 s43, s3, 1"); a("s_lshl_b32 s46, s43, 2")
    a("s_add_u32 s42, s42, s46"); a(f"s_add_u32 s42, s42, {PART}")
    a("v_lshl_add_u32 v4, v1, 4, s42")
    for w in range(1, 4): a(f"v_add_u32 v{4+w}, {w*2048}, v4")
    a("s_lshl_b32 s46, s43, 3"); a(f"s_add_u32 s46, s46, {ML}")
    a("v_mov_b32 v8, s46")
    a("s_lshl_b32 s43, s40, 2")
    a("s_add_u32 s42, s43, s3"); a("s_lshl_b32 s42, s42, 2"); a("s_add_u32 s42, s42, s23")
    a(f"s_mul_i32 s42, s42, {H1SRC}"); a(f"s_add_u32 s42, s42, {H1BOX}")
    a("v_lshl_add_u32 v9, v1, 4, s42")
    a("s_add_u32 s42, s42, 1024"); a("v_and_b32 v10, 7, v1"); a("v_lshl_add_u32 v10, v10, 4, s42")
    a("s_add_u32 s42, s43, s23"); a(f"s_mul_i32 s42, s42, {4*H1SRC}"); a(f"s_add_u32 s42, s42, {H1BOX}")
    a(f"v_mul_u32_u24 v11, {H1SRC}, v3"); a("v_add_u32 v11, s42, v11")
    a("v_add_u32 v12, 1024, v11")
    a("s_lshl_b32 s46, s3, 8"); a("v_lshl_add_u32 v11, v2, 4, v11"); a("v_add_u32 v11, s46, v11")
    a("s_lshl_b32 s42, s3, 6"); a(f"s_add_u32 s42, s42, {OBUF}")
    a("v_lshl_add_u32 v13, v2, 2, s42")
    a("v_lshlrev_b32 v14, 4, v3"); a(f"v_add_u32 v14, {OBUF}, v14")
    a.c("hop-2 publish: ((b*32 + 8h + (j>>1))*32 + rho)*128 + ((j&1)*4 + g)*16")
    a("s_lshl_b32 s42, s22, 5"); a("s_lshl_b32 s43, s3, 3"); a("s_add_u32 s42, s42, s43")
    a("v_lshrrev_b32 v15, 1, v2"); a("v_add_u32 v15, s42, v15")
    a("v_lshlrev_b32 v15, 5, v15"); a("v_add_u32 v15, s41, v15"); a("v_lshlrev_b32 v15, 7, v15")
    a("v_and_b32 v16, 1, v2"); a("v_lshl_add_u32 v16, v16, 2, v3"); a("v_lshl_add_u32 v15, v16, 4, v15")
    a(f"v_add_u32 v15, {H2BOX}, v15")
    a("v_and_b32 v16, 1, v3"); a("v_cmp_eq_u32 s[54:55], 1, v16", "g & 1")
    a("v_cmp_le_u32 s[48:49], 2, v3", "g >= 2")
    a.c("wave 1 touches the hop-1 inbox lines shortly before the stream ends (speed only: they are then in this XCD's L2)")
    a("s_cmp_eq_u32 s3, 1"); a("s_cbranch_scc0 L_lw2")
    a(f"v_mov_b32 v16, {FLG}")
    a("s_mov_b32 s47, 0")
    a.label("L_lwpoll")
    a("ds_read_b32 v17, v16")
    a("s_add_u32 s47, s47, 1")
    a(f"s_cmp_gt_u32 s47, {SPIN_MAX*4}")
    a("s_cbranch_scc1 L_lwgo")
    a("s_waitcnt lgkmcnt(0)")
    a("v_readfirstlane_b32 s46, v17")
    a.nop(1)
    a("s_cmp_lg_u32 s46, 0")
    a("s_cbranch_scc1 L_lwgo")
    a("s_sleep 8")
    a("s_branch L_lwpoll")
    a.label("L_lwgo")
    a("s_waitcnt lgkmcnt(0)")
    a("s_lshl_b32 s42, s40, 2"); a("s_add_u32 s42, s42, s23"); a(f"s_mul_i32 s42, s42, {4*H1SRC}"); a(f"s_add_u32 s42, s42, {H1BOX}")
    a("v_lshl_add_u32 v16, v1, 4, s42")
    for q in range(4): a(f"global_load_dwordx4 {vr(96+4*q,4)}, v16, s[18:19] offset:{q*1024} sc1")
    a("s_mov_b64 exec, 0xffffffff")
    a("v_add_u32 v16, 4096, v16")
    a(f"global_load_dwordx4 {vr(112,4)}, v16, s[18:19] sc1")
    a("s_mov_b64 exec, -1")
    a("s_waitcnt vmcnt(0)")
    a.label("L_lw2")
    a("v_mov_b32 v50, s44"); a("v_mov_b32 v51, s45"); a("v_mov_b32 v54, s44"); a("v_mov_b32 v55, s45")
    a("v_mov_b32 v58, s44"); a("v_mov_b32 v59, s45", "tag words of the granules that are published")
    a("s_barrier", "B2: the streamers' partials are in LDS")
    a.c("---- merge the four streamers: wave h forms quarter h (head h>>1, dims (h&1)*128 + 2*lane, +1)")
    for w in range(4):
        a(f"ds_read_b64 {vr(16+w*2,2)}, v8 offset:{w*16}")
    for w in range(4):
        a(f"ds_read2_b32 {vr(24+w*2,2)}, v{4+w} offset0:0 offset1:2")
    a("s_waitcnt lgkmcnt(4)")
    a("v_max3_f32 v52, v16, v18, v20"); a("v_max_f32 v52, v52, v22")
    for w in range(4): a(f"v_sub_f32 v{32+w}, v{16+w*2}, v52")
    for w in range(4): a(f"v_exp_f32 v{32+w}, v{32+w}")
    a("s_waitcnt lgkmcnt(0)")
    a("v_mul_f32 v48, v32, v24"); a("v_mul_f32 v49, v32, v25"); a("v_mul_f32 v53, v32, v17")
    for w in range(1,4):
        a(f"v_fmac_f32 v48, v{32+w}, v{24+2*w}"); a(f"v_fmac_f32 v49, v{32+w}, v{25+2*w}")
        a(f"v_fmac_f32 v53, v{32+w}, v{17+2*w}")
    def h1_publish(pol):
        a("global_store_dwordx4 v9, v[48:51], s[18:19]" + pol)
        a("s_mov_b64 exec, 0xff")
        a("global_store_dwordx4 v10, v[52:55], s[18:19]" + pol)
        a("s_mov_b64 exec, -1")
    a("s_cmp_eq_u32 s37, 1"); a("s_cbranch_scc1 L_h1fast")
    h1_publish(" sc1")
    a(f"s_sleep {H1SLOW}")
    a("s_branch L_h1pub")
    a.label("L_h1fast")
    h1_publish("")
    a(f"s_sleep {H1FAST}")
    a.label("L_h1pub")
    a.c("---- hop 1: gather the four splits of this workgroup's quarter.  Wave h takes k in [32h, 32h+32):")
    a.c("lane = (source g, pair j) -> one data granule and its source's {max, sum} granule")
    def h1_loads():
        a("global_load_dwordx4 v[16:19], v11, s[18:19] sc1")
        a("global_load_dwordx4 v[20:23], v12, s[18:19] sc1")
    def h1_check():
        a("v_xor_b32 v24, s44, v18"); a("v_xor_b32 v25, s45, v19"); a("v_xor_b32 v26, s44, v22"); a("v_xor_b32 v27, s45, v23")
        a("v_or3_b32 v24, v24, v25, v26"); a("v_or_b32 v24, v24, v27")
        a("v_cmp_ne_u32 vcc, 0, v24")
    poll("h1", h1_loads, h1_check)
    a.c("M = max over the four sources (lanes l, l^16, l^32, l^48); o = sum f*o / sum f*l")
    a("v_mov_b32 v24, v20"); a("v_mov_b32 v25, v20"); a.nop(2)
    a("v_permlane16_swap_b32 v24, v25"); a.nop(1)
    a("v_max_f32 v24, v24, v25"); a("v_mov_b32 v25, v24"); a.nop(2)
    a("v_permlane32_swap_b32 v24, v25"); a.nop(1)
    a("v_max_f32 v24, v24, v25")
    a("v_sub_f32 v24, v20, v24")
    a("v_exp_f32 v24, v24")
    a.nop(1)
    a("v_mul_f32 v28, v24, v21"); a("v_mul_f32 v29, v24, v16"); a("v_mul_f32 v30, v24, v17")
    for k in range(3): a(f"v_mov_b32 v{32+k}, v{28+k}")
    a.nop(1)
    for k in range(3): a(f"v_permlane16_swap_b32 v{28+k}, v{32+k}")
    a.nop(1)
    for k in range(3): a(f"v_add_f32 v{28+k}, v{28+k}, v{32+k}")
    for k in range(3): a(f"v_mov_b32 v{32+k}, v{28+k}")
    a.nop(1)
    for k in range(3): a(f"v_permlane32_swap_b32 v{28+k}, v{32+k}")
    a.nop(1)
    for k in range(3): a(f"v_add_f32 v{28+k}, v{28+k}, v{32+k}")
    a("v_rcp_f32 v28, v28")
    a.nop(1)
    a("v_mul_f32 v29, v29, v28"); a("v_mul_f32 v30, v30, v28")
    a("v_cvt_pk_bf16_f32 v29, v29, v30")
    a("s_mov_b64 exec, 0xffff")
    a("ds_write_b32 v13, v29")
    a("s_mov_b64 exec, -1")
    a("s_waitcnt lgkmcnt(0)")
    a("s_barrier", "B3 (helpers only: the streamers have ended)")
    a.c("---- y = o quarter @ wo rows")
    for ks in range(4):
        a(f"ds_read_b128 {vr(16+ks*4,4)}, v14 offset:{ks*64}")
    for ks in range(4):
        a(f"s_waitcnt lgkmcnt({3-ks})")
        for c in range(8):
            cc = "0" if ks == 0 else vr(ACC+4*c,4)
            a(f"v_mfma_f32_16x16x32_bf16 {vr(ACC+4*c,4)}, {vr(16+ks*4,4)}, {vr(F+ks*32+c*4,4)}, {cc}")
    a.c("lane (j, g) publishes columns 128h + 8j + 2g, + 1")
    a.nop(5)
    a(f"v_cndmask_b32 v60, v{ACC+0}, v{ACC+8}, s[54:55]"); a(f"v_cndmask_b32 v61, v{ACC+4}, v{ACC+12}, s[54:55]")
    a.nop(1)
    a(f"v_cndmask_b32 v62, v{ACC+16}, v{ACC+24}, s[54:55]")
    a.nop(2)
    a(f"v_cndmask_b32 v63, v{ACC+20}, v{ACC+28}, s[54:55]")
    a("v_cndmask_b32 v56, v60, v62, s[48:49]"); a("v_cndmask_b32 v57, v61, v63, s[48:49]")
    a("s_mov_b64 exec, s[52:53]")
    a("global_store_dwordx4 v15, v[56:59], s[18:19] sc1")
    a("s_mov_b64 exec, -1")
    a.c("---- hop 2: wave 0 of the workgroups with rho < 28 sums 16 output columns over the 32 workgroups of this batch")
    a("s_cmp_eq_u32 s3, 0"); a("s_cbranch_scc0 L_end")
    a("s_cmp_lt_u32 s41, 28"); a("s_cbranch_scc0 L_end")
    a("s_lshl_b32 s42, s22, 5"); a("s_add_u32 s42, s42, s41"); a("s_lshl_b32 s42, s42, 12")
    a(f"s_add_u32 s42, s42, {H2BOX}")
    a("v_lshl_add_u32 v6, v1, 4, s42")
    a(f"s_sleep {H2DELAY}")
    def h2_loads():
        for q in range(4):
            a(f"global_load_dwordx4 {vr(16+4*q,4)}, v6, s[18:19] offset:{q*1024} sc1")
    def h2_check():
        a("v_xor_b32 v32, s44, v18"); a("v_xor_b32 v33, s45, v19"); a("v_or_b32 v32, v32, v33")
        for q in range(1, 4):
            a(f"v_xor_b32 v33, s44, v{16+4*q+2}"); a(f"v_xor_b32 v34, s45, v{16+4*q+3}"); a("v_or3_b32 v32, v32, v33, v34")
        if EXPBY: a("v_cndmask_b32 v32, v32, 0, s[66:67]")
        a("v_cmp_ne_u32 vcc, 0, v32")
    if EXPBY:
        a("s_and_b32 s46, s41, 7"); a("v_lshrrev_b32 v33, 3, v1"); a("v_cmp_eq_u32 s[66:67], s46, v33"); a.nop(2)
    poll("h2", h2_loads, h2_check)
    for k in range(2): a(f"v_add_f32 v{16+k}, v{16+k}, v{20+k}"); a(f"v_add_f32 v{24+k}, v{24+k}, v{28+k}")
    for k in range(2): a(f"v_add_f32 v{16+k}, v{16+k}, v{24+k}")
    a.nop(2)
    for k in range(2): a(f"v_add_f32_dpp v{20+k}, v{16+k}, v{16+k} row_ror:8 row_mask:0xf bank_mask:0xf")
    for k in range(2): a(f"v_mov_b32 v{16+k}, v{20+k}")
    a.nop(2)
    for k in range(2): a(f"v_permlane16_swap_b32 v{16+k}, v{20+k}")
    a.nop(2)
    for k in range(2): a(f"v_add_f32 v{16+k}, v{16+k}, v{20+k}")
    for k in range(2): a(f"v_mov_b32 v{20+k}, v{16+k}")
    a.nop(2)
    for k in range(2): a(f"v_permlane32_swap_b32 v{16+k}, v{20+k}")
    a.nop(2)
    for k in range(2): a(f"v_add_f32 v{16+k}, v{16+k}, v{20+k}")
    a("v_cvt_pk_bf16_f32 v24, v16, v17")
    a("s_mul_i32 s42, s22, 896"); a("s_lshl_b32 s43, s41, 5"); a("s_add_u32 s42, s42, s43")
    a("v_lshl_add_u32 v6, v1, 2, s42")
    a("s_mov_b64 exec, 0xff")
    a("global_store_dword v6, v24, s[14:15]", "out[b][16*rho + 2*lane, +1]")
    if DIAGCNT:
        a("s_and_b32 s70, s2, 7"); a("s_lshr_b32 s71, s2, 3"); a("s_mul_i32 s72, s70, 5"); a("s_cmp_eq_u32 s71, s72"); a("s_cbranch_scc0 L_nodc")
        a("s_cmp_lt_u32 s70, 5"); a("s_cbranch_scc0 L_nodc")
        a("s_mul_i32 s72, s70, 12"); a("s_mov_b64 exec, 1")
        a("v_mov_b32 v40, s72"); a("v_mov_b32 v41, s60"); a("v_mov_b32 v42, s61"); a("v_mov_b32 v43, s62")
        a("v_add_u32 v41, 100, v41"); a("v_add_u32 v42, 100, v42"); a("v_add_u32 v43, 100, v43")
        a("global_store_dword v40, v41, s[16:17]"); a("global_store_dword v40, v42, s[16:17] offset:4"); a("global_store_dword v40, v43, s[16:17] offset:8")
        a.label("L_nodc")
    a.c("workgroup 0 advances the epoch word: its last gather depends on every workgroup having read the old one")
    a("s_or_b32 s46, s41, s22"); a("s_cmp_lg_u32 s46, 0")
    a("s_cbranch_scc1 L_end")
    a(f"s_mov_b32 s46, {EPOCH}")
    a("s_mov_b64 exec, 1")
    a("v_mov_b32 v10, s46"); a("v_mov_b32 v12, s44"); a("v_mov_b32 v13, s45")
    a("global_store_dwordx2 v10, v[12:13], s[18:19] sc1")
    a("s_branch L_end")

    if STREAM_FIRST: a.raw("@@B")
    a.c("==================== streamers ====================")
    a.label("L_stream")
    KOFF, VOFF, KRD, VRD = 4, 12, 16, 20
    QF, FR, S, O, LA, ONES, P, TMP = 28, 60, 92, 156, 220, 224, 226, 228
    VM, VMC = 232, 233
    a("s_sub_u32 s3, s3, 4", "w")
    a("s_lshl_b32 s40, s22, 3"); a("s_add_u32 s40, s40, s20"); a("s_lshl_b32 s40, s40, 21")
    a("s_lshl_b32 s41, s23, 19"); a("s_add_u32 s40, s40, s41", "byte offset of this split in K / V")
    a("s_lshl_b32 s41, s3, 12", "w*4096: the waves interleave at 4 KiB")
    a("s_lshl_b32 s42, s3, 15", "ring base")
    a.c("DMA offsets: hi*512 + ((L&31) ^ swizzle(row))*16; K: swizzle = row & 15, V: (row & 7) << 1")
    a("v_lshrrev_b32 v234, 5, v1")
    a("v_and_b32 v235, 31, v1")
    for n in range(8):
        a(f"v_add_u32 v236, {2*n}, v234")
        a("v_xor_b32 v236, v236, v235")
        a("v_lshlrev_b32 v236, 4, v236")
        a(f"v_lshl_add_u32 v{KOFF+n}, v234, 9, v236")
    a("s_waitcnt lgkmcnt(0)")
    a("s_add_u32 s24, s6, s40"); a("s_addc_u32 s25, s7, 0"); a("s_mov_b32 s26, 0x80000"); a("s_mov_b32 s27, 0x20000", "SRD K")
    a("s_add_u32 s28, s8, s40"); a("s_addc_u32 s29, s9, 0"); a("s_mov_b32 s30, 0x80000"); a("s_mov_b32 s31, 0x20000", "SRD V")

    RU, NU = 4*UPT, 32*UPT
    queue = []
    state = {"x": 0}
    def issue():
        x = state["x"]; e = x // UPT; u = x % UPT; t = e & 15
        per = 8 // UPT
        hf = (u*per) >> 2
        isK = e < 16
        a(f"s_add_u32 m0, s42, {(e & 3)*8192 + hf*4096}")
        a(f"s_add_u32 s43, s41, {t*32768 + hf*16384}")
        for n in range(u*per, (u+1)*per):
            nn = n & 3
            voff = KOFF + n if isK else VOFF + nn
            srd = "s[24:27]" if isK else "s[28:31]"
            a(f"buffer_load_dwordx4 v{voff}, {srd}, s43 offen offset:{nn*1024}{KPOL if isK else VPOL} lds")
            queue.append(x)
        state["x"] = x + 1
        if x + 1 == LATEWARM:
            a("s_cmp_lg_u32 s3, 0"); a("s_cbranch_scc1 L_noflag")
            a(f"v_mov_b32 v243, {FLG}"); a("v_mov_b32 v244, 1"); a("ds_write_b32 v243, v244")
            a.label("L_noflag")
    def wait_unit(h):
        if h < 0 or h not in queue: return
        last = max(i for i, v in enumerate(queue) if v == h)
        a(f"s_waitcnt vmcnt({len(queue) - 1 - last})")
        del queue[:last+1]
    a("s_barrier", "B0: behind the q loads")
    while state["x"] < WI: issue()
    a.c("remaining address tables (computed while the first loads fly)")
    for nn in range(4):
        a(f"v_add_u32 v236, {2*nn}, v234")
        a("v_lshlrev_b32 v236, 1, v236")
        a("v_xor_b32 v236, v236, v235")
        a("v_lshlrev_b32 v236, 4, v236")
        a(f"v_lshl_add_u32 v{VOFF+nn}, v234, 9, v236")
    a.c("K reads: ring + i*512 + ((4c+g)^i)*16")
    a("v_lshl_add_u32 v237, v2, 9, s42")
    for c in range(4):
        a(f"v_add_u32 v236, {4*c}, v3")
        a("v_xor_b32 v236, v236, v2")
        a(f"v_lshl_add_u32 v{KRD+c}, v236, 4, v237")
    a.c("V reads (transposing): ring + row*512 + ((2dt + (c4>>1)) ^ ((row&7)<<1))*16 + (c4&1)*8, row = 4g + (j>>2), c4 = j&3")
    a("v_lshrrev_b32 v236, 2, v2")
    a("v_lshl_add_u32 v236, v3, 2, v236")
    a("v_lshl_add_u32 v237, v236, 9, s42")
    a("v_and_b32 v238, 1, v2"); a("v_lshl_add_u32 v237, v238, 3, v237")
    a("v_and_b32 v236, 7, v236"); a("v_lshlrev_b32 v236, 1, v236")
    a("v_bfe_u32 v238, v2, 1, 1")
    for dt in range(8):
        a(f"v_add_u32 v239, {2*dt}, v238")
        a("v_xor_b32 v239, v239, v236")
        a(f"v_lshl_add_u32 v{VRD+dt}, v239, 4, v237")
    a(f"v_mov_b32 v{ONES}, 0x3f803f80"); a(f"v_mov_b32 v{ONES+1}, 0x3f803f80")
    a(f"v_mov_b32 v{VM}, 0xff800000")
    a(f"s_mov_b32 s44, {f2u(C_SCALE):#x}", "log2(e) / sqrt(Dh)")
    a("v_and_b32 v236, 1, v2"); a("v_lshlrev_b32 v236, 9, v236"); a("v_lshl_add_u32 v236, v3, 4, v236")
    a(f"v_add_u32 v240, {Q_LDS}, v236", "q fragments: column j holds head j & 1")
    a("s_lshl_b32 s45, s3, 11"); a(f"s_add_u32 s45, s45, {PART}")
    a("v_lshl_add_u32 v241, v2, 3, s45")
    a("s_lshl_b32 s45, s3, 4"); a(f"s_add_u32 s45, s45, {ML}")
    a("v_lshl_add_u32 v242, v2, 3, s45")

    REGBUF = [O, O+32, S+32][:NREG]
    def lds_read(e, base):
        isK = e < 16; slot = e & 3
        if isK:
            for c in range(8):
                a(f"ds_read_b128 {vr(base+4*c,4)}, v{KRD+(c&3)} offset:{slot*8192 + (c>>2)*256}")
        else:
            for dt in range(16):
                a(f"ds_read_b64_tr_b16 {vr(base+2*dt,2)}, v{VRD+(dt&7)} offset:{slot*8192 + (dt>>3)*256}")
    def k_mfma(t, base):
        for c in range(8):
            cc = "0" if c == 0 else vr(S+4*t,4)
            a(f"v_mfma_f32_16x16x32_bf16 {vr(S+4*t,4)}, {vr(base+4*c,4)}, {vr(QF+4*c,4)}, {cc}")
        if t > 0:
            a(f"v_max3_f32 v{VM}, v{VM}, v{S+4*(t-1)}, v{S+4*(t-1)+1}")
            a(f"v_max3_f32 v{VM}, v{VM}, v{S+4*(t-1)+2}, v{S+4*(t-1)+3}")
        if t == 15:
            a.c("true maximum of this wave's 256 scores per head")
            a.nop(8)
            a(f"v_max3_f32 v{VM}, v{VM}, v{S+60}, v{S+61}")
            a(f"v_max3_f32 v{VM}, v{VM}, v{S+62}, v{S+63}")
            a(f"v_mov_b32 v{TMP}, v{VM}"); a.nop(2)
            a(f"v_permlane16_swap_b32 v{VM}, v{TMP}"); a.nop(2)
            a(f"v_max_f32 v{VM}, v{VM}, v{TMP}")
            a(f"v_mov_b32 v{TMP}, v{VM}"); a.nop(2)
            a(f"v_permlane32_swap_b32 v{VM}, v{TMP}"); a.nop(2)
            a(f"v_max_f32 v{VM}, v{VM}, v{TMP}")
            a(f"v_mul_f32 v{VMC}, s44, v{VM}")
    def p_calc(t):
        for r in range(4): a(f"v_fma_f32 v{TMP+r}, v{S+4*t+r}, s44, -v{VMC}")
        for r in range(4): a(f"v_exp_f32 v{TMP+r}, v{TMP+r}")
        a.nop(1)
        a(f"v_cvt_pk_bf16_f32 v{P}, v{TMP}, v{TMP+1}"); a(f"v_cvt_pk_bf16_f32 v{P+1}, v{TMP+2}, v{TMP+3}")
    def v_mfma(t, part, last=False):
        if part == 0:
            cc = "0" if t == 0 else vr(LA,4)
            a(f"v_mfma_f32_16x16x16_bf16 {vr(LA,4)}, {vr(P,2)}, {vr(ONES,2)}, {cc}")
        for dt in range(8*part, 8*part+8):
            if last: a(f"s_waitcnt lgkmcnt({15-dt})")
            cc = "0" if t == 0 else vr(O+4*dt,4)
            a(f"v_mfma_f32_16x16x16_bf16 {vr(O+4*dt,4)}, {vr(P,2)}, {vr(FR+2*dt,2)}, {cc}")
    a.c("head: the ring is filled under the window rule; the first tiles move on into registers to free their slots")
    while state["x"] < RU + UPT*NREG:
        x = state["x"]
        if x >= RU and x % UPT == 0:
            e = (x - RU)//UPT
            for u_ in range(UPT): wait_unit(UPT*e + u_)
            lds_read(e, REGBUF[e])
            a("s_waitcnt lgkmcnt(0)")
        wait_unit(x - WH)
        issue()
    a("s_barrier", "B1: q is in LDS")
    for c in range(8):
        a(f"ds_read_b128 {vr(QF+4*c,4)}, v240 offset:{c*64}")
    pending = None
    for e in range(NREG, 32):
        isK = e < 16; t = e & 15
        Wc = WMID[2] if (WMID[2] and WMID[0] <= e <= WMID[1]) else W
        a.c(f"---- {'K' if isK else 'V'} tile {t} (the matrix work of the previous tile runs between the waits)")
        for n_, hx in enumerate(range(UPT*e, UPT*(e+1))):
            wait_unit(hx)
            while state["x"] < min(hx + 1 + Wc, NU) and state["x"] - RU < UPT*e:
                issue()
            if pending is not None:
                pe = pending; pt = pe & 15
                if n_ == 0:
                    if pe < 16:
                        if pe == NREG:
                            for e2 in range(NREG): k_mfma(e2, REGBUF[e2])
                        k_mfma(pt, FR)
                    else: v_mfma(pt, 0)
                if n_ == 1:
                    if pe >= 16: v_mfma(pt, 1)
                    pending = None
            if n_ == 2 and not isK:
                p_calc(t)
        lds_read(e, FR)
        if e != 31:
            a("s_waitcnt lgkmcnt(0)")
            x = state["x"]
            if x < NU and x - RU < UPT*(e+1):
                if x > UPT*(e+1) + Wc:
                    for _ in range(UPT//2):
                        wait_unit(state["x"] - Wc); issue()
                else:
                    while state["x"] < min(UPT*(e+1) + Wc, NU):
                        wait_unit(state["x"] - Wc); issue()
            pending = e
        else:
            v_mfma(t, 0, True); v_mfma(t, 1, True)
    assert state["x"] == NU and not queue
    a.c("---- partials -> LDS: {max, sum} per head, O[d][head]")
    a("v_cmp_eq_u32 vcc, 1, v2")
    a.nop(2)
    a(f"v_cndmask_b32 v{TMP+1}, v{LA}, v{LA+1}, vcc")
    a(f"v_mov_b32 v{TMP}, v{VMC}")
    a("s_mov_b64 exec, 3")
    a(f"ds_write_b64 v242, {vr(TMP,2)}")
    a("s_mov_b64 exec, 0xffff")
    for dt in range(16):
        if dt == 13: a.nop(2)
        a(f"ds_write_b64 v241, {vr(O+4*dt,2)} offset:{dt*128}")
    a("s_mov_b64 exec, -1")
    a("s_waitcnt lgkmcnt(0)")
    a("s_barrier", "B2")
    if STREAM_FIRST:
        a("s_endpgm")
        a.raw("@@C")
    a.label("L_end")
    a("s_endpgm")
    a.raw('.section .rodata,"a"')
    a.raw(".p2align 6")
    a.raw(f".amdhsa_kernel {KNAME}")
    a.raw("  .amdhsa_next_free_vgpr 256")
    a.raw("  .amdhsa_next_free_sgpr 96")
    a.raw("  .amdhsa_accum_offset 256")
    a.raw("  .amdhsa_group_segment_fixed_size 0")
    a.raw("  .amdhsa_kernarg_size 64")
    a.raw("  .amdhsa_user_sgpr_count 2")
    a.raw("  .amdhsa_user_sgpr_kernarg_segment_ptr 1")
    a.raw("  .amdhsa_system_sgpr_workgroup_id_x 1")
    if DENORM: a.raw("  .amdhsa_float_denorm_mode_32 3")
    a.raw(".end_amdhsa_kernel")
    t = a.text()
    if STREAM_FIRST:
        pre, rest = t.split("@@A\n"); helpers, rest = rest.split("@@B\n"); stream, post = rest.split("@@C\n")
        t = pre + stream + helpers + post
    return t

if __name__ == "__main__":
    from build import build
    name = sys.argv[1] if len(sys.argv) > 1 else "final"
    for arg in sys.argv[2:]:
        k, v = arg.split("=", 1)
        globals()[k] = eval(v)
    open(name + ".s", "w").write(gen())
    print(build(name + ".s"))
```
